```python
import torch

def _softmax(x, axis=-1):
    return torch.softmax(x, dim=axis)

def _gelu(x):
    return torch.nn.functional.gelu(x, approximate='tanh')

def _silu(x):
    return torch.nn.functional.silu(x)

def _sigmoid(x):
    return torch.sigmoid(x)

def _layernorm(x, axis=-1, eps=1e-05):
    m = x.mean(dim=axis, keepdim=True)
    v = x.var(dim=axis, keepdim=True, unbiased=False)
    return (x - m) / torch.sqrt(v + eps)

def _scatter_add(tgt, idx, src, axis=0):
    return tgt.clone().index_add_(axis, idx, src)

def _segment_sum(src, seg, n):
    out = torch.zeros((n,) + src.shape[1:], dtype=src.dtype)
    return out.index_add_(0, seg, src)

def _pad(x, pw):
    flat = tuple((v for pair in reversed(pw) for v in pair))
    return torch.nn.functional.pad(x, flat)
kernel_name = 'concat_heads__linear_attn_block__memory_aug_recurrent_mem_tr__prompt'

def setup_inputs():

    _w = lambda a: (lambda t: t.to(torch.bfloat16) if t.is_floating_point() else t)(torch.as_tensor(a))

    def _A_setup():
        B, S, D = (1, 2048, 1024)
        return {'x': _w((lambda *s: torch.randn(*s, dtype=torch.bfloat16) * 0.05)(B, S, D)), 'wqkv': _w((lambda *s: torch.randn(*s, dtype=torch.bfloat16) * 1.6)(D, 3 * D)), 'wo': _w((lambda *s: torch.randn(*s, dtype=torch.bfloat16) * 0.05)(D, D))}
    _A_in = _A_setup()

    def _B_setup():
        B, S, Dm = (1, 2048, 1024)
        H, Dh = (32, 128)
        M, seg = (8, 32)
        seg = min(seg, S)
        S = S // seg * seg
        return {'x': _w((lambda *s: torch.randn(*s, dtype=torch.bfloat16) * 0.05)(B, S, Dm)), 'mem0': _w((lambda *s: torch.randn(*s, dtype=torch.bfloat16) * 0.8)(B, M, Dm)), 'Wq': _w((lambda *s: torch.randn(*s, dtype=torch.bfloat16) * 1.6)(Dm, H, Dh) * Dm ** (-0.5)), 'Wk': _w((lambda *s: torch.randn(*s, dtype=torch.bfloat16) * 1.6)(Dm, H, Dh) * Dm ** (-0.5)), 'Wv': _w((lambda *s: torch.randn(*s, dtype=torch.bfloat16) * 0.8)(Dm, H, Dh) * Dm ** (-0.5)), 'Wo': _w((lambda *s: torch.randn(*s, dtype=torch.bfloat16) * 0.8)(H, Dh, Dm) * (H * Dh) ** (-0.5)), 'seg_len': seg}
    _B_in = _B_setup()
    return {'A_x': _A_in['x'], 'A_wqkv': _A_in['wqkv'], 'A_wo': _A_in['wo'], 'B_x': _B_in['x'], 'B_mem0': _B_in['mem0'], 'B_Wq': _B_in['Wq'], 'B_Wk': _B_in['Wk'], 'B_Wv': _B_in['Wv'], 'B_Wo': _B_in['Wo'], 'B_seg_len': _B_in['seg_len']}

def reference(A_x, A_wqkv, A_wo, B_x, B_mem0, B_Wq, B_Wk, B_Wv, B_Wo, B_seg_len):

    def _A_ref(x, wqkv, wo):
        B, S, D = x.shape
        H = 32
        Dh = D // H
        qkv = (lambda x, *d: x.permute(*d))((x @ wqkv).reshape(B, S, 3, H, Dh), 2, 0, 3, 1, 4)
        q, k, v = (qkv[0], qkv[1], qkv[2])
        phi = lambda t: torch.where(t > 0, t + 1, torch.exp(t)) + 1e-06
        pq, pk = (phi(q), phi(k))
        kv = torch.einsum('bhsd,bhse->bhde', pk, v)
        z = torch.einsum('bhsd->bhd', pk)
        num = torch.einsum('bhqd,bhde->bhqe', pq, kv)
        den = torch.einsum('bhqd,bhd->bhq', pq, z)[..., None] + 1e-06
        o = num / den
        return (lambda x, *d: x.permute(*d))(o, 0, 2, 1, 3).reshape(B, S, D) @ wo

    def _B_ref(x, mem0, Wq, Wk, Wv, Wo, seg_len):
        B, S, Dm = x.shape
        H, Dh = (Wq.shape[1], Wq.shape[2])
        M = mem0.shape[1]
        scale = Dh ** (-0.5)
        n_seg = S // seg_len
        L = M + seg_len
        idx = torch.arange(L)
        mask = (idx[:, None] < M) | (idx[:, None] >= idx[None, :])
        mem = mem0
        outs = []
        for s in range(n_seg):
            xs = x[:, s * seg_len:(s + 1) * seg_len, :].clone()
            h = torch.concatenate([mem, xs], axis=1)
            q = torch.einsum('btd,dhe->bhte', h, Wq)
            k = torch.einsum('btd,dhe->bhte', h, Wk)
            v = torch.einsum('btd,dhe->bhte', h, Wv)
            scores = torch.einsum('bhqe,bhke->bhqk', q, k) * scale
            scores = torch.where(mask[None, None], scores, -1000000000.0)
            p = _softmax(scores, axis=-1)
            o = torch.einsum('bhqk,bhke->bhqe', p, v)
            o = torch.einsum('bhte,hed->btd', o, Wo)
            mem = o[:, :M, :].clone()
            outs.append(o[:, M:, :])
        return torch.concatenate(outs, axis=1)
    a = _A_ref(A_x, A_wqkv, A_wo)
    b = _B_ref(B_x, B_mem0, B_Wq, B_Wk, B_Wv, B_Wo, B_seg_len)
    return torch.concatenate([a, b], axis=-1)
```

```python
class Asm:
    def __init__(self):
        self.lines = []
        self._uid = 0
    def __call__(self, s):
        for l in s.split('\n'):
            l = l.strip()
            if l:
                self.lines.append('    ' + l)
    def label(self, name):
        self.lines.append(name + ':')
    def raw(self, s):
        self.lines.append(s)
    def c(self, s):
        self.lines.append('    ; ' + s)
    def uid(self, base='L'):
        self._uid += 1
        return f'{base}_{self._uid}'
    def text(self):
        return '\n'.join(self.lines) + '\n'

def vr(a, n=1):
    return f'v{a}' if n == 1 else f'v[{a}:{a+n-1}]'
def ar(a, n=1):
    return f'a{a}' if n == 1 else f'a[{a}:{a+n-1}]'
def sr(a, n=1):
    return f's{a}' if n == 1 else f's[{a}:{a+n-1}]'

def kernel_begin(A, name):
    A.raw('.text')
    A.raw(f'.globl {name}')
    A.raw('.p2align 8')
    A.raw(f'.type {name},@function')
    A.label(name)

def kernel_desc(A, name, vgpr=256, sgpr=102, accum=256, kernarg=104):
    A.raw('.section .rodata,"a"')
    A.raw('.p2align 6')
    A.raw(f'.amdhsa_kernel {name}')
    A.raw(f'  .amdhsa_next_free_vgpr {vgpr}')
    A.raw(f'  .amdhsa_next_free_sgpr {sgpr}')
    A.raw(f'  .amdhsa_accum_offset {accum}')
    A.raw('  .amdhsa_group_segment_fixed_size 0')
    A.raw(f'  .amdhsa_kernarg_size {kernarg}')
    A.raw('  .amdhsa_user_sgpr_count 2')
    A.raw('  .amdhsa_user_sgpr_kernarg_segment_ptr 1')
    A.raw('  .amdhsa_system_sgpr_workgroup_id_x 1')
    A.raw('  .amdhsa_float_denorm_mode_32 3')
    A.raw('  .amdhsa_float_denorm_mode_16_64 3')
    A.raw('.end_amdhsa_kernel')

def srd(A, d, base, nbytes):
    A(f's_mov_b32 s{d}, s{base}')
    A(f's_and_b32 s{d+1}, s{base+1}, 0xffff')
    A(f's_mov_b32 s{d+2}, {nbytes:#x}')
    A(f's_mov_b32 s{d+3}, 0x20000')
```

```python
from asmlib import *
from layout import *
from gemm_gen import fhex, LOG2E, WSR, vLane, sT0, sT1, sT2
sMk = 68
sSc, sNeg, sNinf = 78, 79, 80
def attn_setup(A):
    L = vLane
    A(f'v_and_b32 v3, 15, v{L}'); A(f'v_lshrrev_b32 v4, 4, v{L}')
    for tb in range(4):
        A(f'v_lshlrev_b32 v5, 2, v4'); A(f'v_add_u32 v5, {tb}, v5'); A(f'v_cmp_le_u32 s[{sMk+2*tb}:{sMk+2*tb+1}], v5, v3')
    A(f'v_cmp_gt_u32 s[{sMk+8}:{sMk+9}], 2, v4')
    A(f's_mov_b32 s{sSc}, {fhex(128 ** -0.5 * LOG2E)}')
    A(f'v_mov_b32 v8, {fhex(-1e9 * LOG2E)}'); A('v_mov_b32 v9, 0xff800000')
    A(f'v_lshlrev_b32 v10, 4, v{L}')
    A('v_and_b32 v5, 7, v3'); A('v_lshlrev_b32 v11, 13, v5'); A('v_lshl_add_u32 v11, v4, 4, v11')
    A('v_and_b32 v5, 1, v4'); A('v_lshlrev_b32 v12, 4, v3'); A('v_lshl_add_u32 v12, v5, 3, v12')
    A('v_lshlrev_b32 v13, 13, v3'); A('v_lshl_add_u32 v13, v4, 4, v13')
def attn_unit(A, sSeg, sHead, ldflag='', stflag=''):
    vQ, vK, vV, vKM, vVM = 32, 64, 96, 128, 144
    vS, vP, vO = 160, 184, 196
    A(f's_lshl_b32 s{sT0}, s{sHead}, 8'); A(f's_add_u32 s{sT0}, s{sT0}, s{sSeg}')
    A(f's_lshl_b32 s{sT1}, s{sT0}, 12'); A(f's_add_u32 s{sT1}, s{sT1}, {KVF}')
    A(f's_lshl_b32 s{sT0}, s{sT0}, 11'); A(f's_add_u32 s{sT0}, s{sT0}, {QX}')
    A(f's_lshl_b32 s{sT2}, s{sSeg}, 16'); A(f's_lshl_b32 s3, s{sHead}, 8'); A(f's_add_u32 s{sT2}, s{sT2}, s3'); A(f's_add_u32 s{sT2}, s{sT2}, {KM}')
    for j in range(4):
        for t in range(2): A(f'buffer_load_dwordx4 v[{vQ+8*j+4*t}:{vQ+8*j+4*t+3}], v10, {WSR}, s{sT0} offen offset:{1024*t} {ldflag}')
        for t in range(2): A(f'buffer_load_dwordx4 v[{vK+8*j+4*t}:{vK+8*j+4*t+3}], v10, {WSR}, s{sT1} offen offset:{1024*t} {ldflag}')
        A(f'buffer_load_dwordx4 v[{vKM+4*j}:{vKM+4*j+3}], v11, {WSR}, s{sT2} offen offset:{64*j} {ldflag}')
        A(f's_add_u32 s{sT0}, s{sT0}, {64*2048}'); A(f's_add_u32 s{sT1}, s{sT1}, {64*4096}')
    A(f's_sub_u32 s{sT1}, s{sT1}, {4*64*4096}')
    A(f's_lshl_b32 s{sT2}, s{sSeg}, 16'); A(f's_lshl_b32 s3, s{sHead}, 11'); A(f's_add_u32 s{sT2}, s{sT2}, s3'); A(f's_add_u32 s{sT2}, s{sT2}, {VMF}')
    for j in range(4):
        for t in range(2): A(f'buffer_load_dwordx4 v[{vV+8*j+4*t}:{vV+8*j+4*t+3}], v10, {WSR}, s{sT1} offen offset:{2048+1024*t} {ldflag}')
        for t in range(2): A(f'buffer_load_dwordx2 v[{vVM+4*j+2*t}:{vVM+4*j+2*t+1}], v12, {WSR}, s{sT2} offen offset:{512*j+256*t} {ldflag}')
        A(f's_add_u32 s{sT1}, s{sT1}, {64*4096}')
    A(f's_lshl_b32 s{sT0}, s{sSeg}, 18'); A(f's_lshl_b32 s3, s{sHead}, 8'); A(f's_add_u32 s{sT0}, s{sT0}, s3'); A(f's_add_u32 s{sT0}, s{sT0}, {OB}')
    for j in range(4):
        A(f's_waitcnt vmcnt({16 + 5*(3-j)})')
        for tt in range(2):
            for kt in range(3):
                a = vK + 8*j + 4*kt if kt < 2 else vKM + 4*j
                d = vS + 12*tt + 4*kt
                A(f'v_mfma_f32_16x16x32_bf16 v[{d}:{d+3}], v[{a}:{a+3}], v[{vQ+8*j+4*tt}:{vQ+8*j+4*tt+3}], ' + ('0' if j == 0 else f'v[{d}:{d+3}]'))
    A('s_nop 7')
    for tt in range(2):
        b = vS + 12 * tt
        live = []
        for kt in range(3):
            for r in range(4):
                x = b + 4*kt + r
                if kt < 2 and tt == 0 and r >= 2:
                    A(f'v_mov_b32 v{x}, v8')
                else:
                    A(f'v_mul_f32 v{x}, s{sSc}, v{x}')
                    if kt == 2: A(f'v_cndmask_b32 v{x}, v9, v{x}, s[{sMk+8}:{sMk+9}]')
                    elif (r >> 1) == tt:
                        tb = 2*kt + (r & 1)
                        A(f'v_cndmask_b32 v{x}, v8, v{x}, s[{sMk+2*tb}:{sMk+2*tb+1}]')
                live.append(x)
        m, t = 16, 17
        A(f'v_max3_f32 v{m}, v{live[0]}, v{live[1]}, v{live[2]}')
        for q in range(3, 11, 2): A(f'v_max3_f32 v{m}, v{m}, v{live[q]}, v{live[q+1]}')
        A(f'v_max_f32 v{m}, v{m}, v{live[11]}')
        def xr(op):
            for sw in ('v_permlane16_swap_b32', 'v_permlane32_swap_b32'):
                A(f'v_mov_b32 v{t}, v{m}'); A('s_nop 1'); A(f'{sw} v{m}, v{t}'); A(f'{op} v{m}, v{m}, v{t}')
        xr('v_max_f32')
        for x in live: A(f'v_sub_f32 v{x}, v{x}, v{m}')
        for x in live: A(f'v_exp_f32 v{x}, v{x}')
        A(f'v_add_f32 v{m}, v{live[0]}, v{live[1]}')
        for x in live[2:]: A(f'v_add_f32 v{m}, v{m}, v{x}')
        xr('v_add_f32')
        A(f'v_rcp_f32 v{m}, v{m}'); A('s_nop 0')
        for x in live: A(f'v_mul_f32 v{x}, v{x}, v{m}')
        p = vP + 6 * tt
        A(f'v_cvt_pk_bf16_f32 v{p}, v{b}, v{b+1}'); A(f'v_cvt_pk_bf16_f32 v{p+1}, v{b+4}, v{b+5}')
        A(f'v_cvt_pk_bf16_f32 v{p+2}, v{b+2}, v{b+3}'); A(f'v_cvt_pk_bf16_f32 v{p+3}, v{b+6}, v{b+7}')
        A(f'v_cvt_pk_bf16_f32 v{p+4}, v{b+8}, v{b+9}'); A(f'v_cvt_pk_bf16_f32 v{p+5}, v{b+10}, v{b+11}')
    A('s_waitcnt vmcnt(0)')
    A('s_nop 0')
    for tt in range(2):
        p = vP + 6 * tt
        for dt in range(8):
            d = vQ + 32*tt + 4*dt
            A(f'v_mfma_f32_16x16x32_bf16 v[{d}:{d+3}], v[{vV+4*dt}:{vV+4*dt+3}], v[{p}:{p+3}], 0')
        for dt in range(8):
            d = vQ + 32*tt + 4*dt
            A(f'v_mfma_f32_16x16x16_bf16 v[{d}:{d+3}], v[{vVM+2*dt}:{vVM+2*dt+1}], v[{p+4}:{p+5}], v[{d}:{d+3}]')
    A(f's_add_u32 s{sT1}, s{sT0}, {16*8192}')
    for tt in range(2):
        if tt == 1: A('s_nop 3')
        for j in range(4):
            c = vQ + 32*tt + 8*j; d = vS + 4 * (4*tt + j) if 4*tt + j < 6 else vO + 4*(4*tt + j - 6)
            for q in range(4): A(f'v_cvt_pk_bf16_f32 v{d+q}, v{c+2*q}, v{c+2*q+1}')
            A(f'buffer_store_dwordx4 v[{d}:{d+3}], v13, {WSR}, s{sT0 if tt == 0 else sT1} offen offset:{64*j} {stflag}')
```

```python
from asmlib import *
from layout import *

gA, gB, gC = 12, 16, 64
sW_ = 26
sAo, sBo_, sBs, sCnt, sMA, sMB = 31, 32, 33, 34, 35, 36
sT0, sT1, sT2 = 38, 39, 40
sRow, sCol = 41, 42
sWM, sWN = 44, 45
vLane = 2
vDA, vDB = 8, 12
vRA, vRB = 16, 20
vFR = 64
vACC = 128
BUF = 65536

class Gemm:
    def __init__(self, A, MI=4, NI=2, WM=2, WN=4):
        self.A = A; self.MI = MI; self.NI = NI; self.WM = WM; self.WN = WN
        self.BM = WM * MI * 32; self.BN = WN * NI * 32
        self.nA = self.BM // 64
        self.nB = self.BN // 64
        self.rowB = self.BN * 2
        self.offB = self.BM * 128
    def common(self):
        A = self.A
        A(f'v_lshrrev_b32 v1, 6, v0'); A(f'v_and_b32 v{vLane}, 63, v0')
        A(f'v_readfirstlane_b32 s{sW_}, v1')
        A('s_nop 3')
    def setup(self, lda, ldb, trans, colmap=None, perm=None, rowmap=False):
        A = self.A; L = vLane
        if perm is None: perm = trans
        sh = self.WN.bit_length() - 1
        A(f's_lshr_b32 s{sWM}, s{sW_}, {sh}'); A(f's_and_b32 s{sWN}, s{sW_}, {self.WN-1}')
        for q in range(self.nA):
            A(f's_mul_i32 s{sT0}, s{sW_}, {8*self.nA}'); A(f's_add_u32 s{sT0}, s{sT0}, {8*q}')
            A(f'v_lshrrev_b32 v3, 3, v{L}'); A(f'v_add_u32 v3, s{sT0}, v3')
            A(f'v_bfe_u32 v4, v3, 1, 3'); A(f'v_and_b32 v5, 7, v{L}'); A('v_xor_b32 v4, v4, v5')
            A(f'v_mul_u32_u24 v3, {lda}, v3'); A(f'v_lshl_add_u32 v3, v4, 4, v3')
            A(f'v_subrev_u32 v{vDA+q}, {1024*q}, v3')
        lpr = self.rowB // 16; rpi = 64 // lpr; lsh = lpr.bit_length() - 1
        assert self.rowB >= 256
        for q in range(self.nB):
            A(f's_mul_i32 s{sT0}, s{sW_}, {rpi*self.nB}'); A(f's_add_u32 s{sT0}, s{sT0}, {rpi*q}')
            A(f'v_lshrrev_b32 v3, {lsh}, v{L}'); A(f'v_add_u32 v3, s{sT0}, v3')
            A(f'v_and_b32 v4, 3, v3'); A('v_lshlrev_b32 v4, 2, v4'); A(f'v_and_b32 v5, {lpr-1}, v{L}'); A('v_xor_b32 v4, v4, v5')
            if colmap: colmap(A, 4, 5)
            else: A('v_lshlrev_b32 v4, 4, v4')
            if rowmap:
                A('v_and_b32 v5, 35, v3'); A('v_bfe_u32 v6, v3, 2, 1'); A('v_lshl_add_u32 v5, v6, 4, v5')
                A('v_bfe_u32 v6, v3, 3, 2'); A('v_lshl_add_u32 v3, v6, 2, v5')
            A(f'v_mul_u32_u24 v3, {ldb}, v3'); A('v_add_u32 v3, v3, v4')
            A(f'v_subrev_u32 v{vDB+q}, {1024*q}, v3')
        A(f's_mov_b32 s{sBs}, {64*ldb}')
        A(f'v_and_b32 v3, 31, v{L}'); A(f'v_lshrrev_b32 v4, 5, v{L}'); A('v_bfe_u32 v5, v3, 1, 3'); A('v_xor_b32 v4, v4, v5')
        A(f's_mul_i32 s{sT0}, s{sWM}, {self.MI*32*128}')
        A('v_lshlrev_b32 v3, 7, v3'); A('v_lshl_add_u32 v3, v4, 4, v3'); A(f'v_add_u32 v{vRA}, s{sT0}, v3')
        for ks in range(1, 4): A(f'v_xor_b32 v{vRA+ks}, {32*ks}, v{vRA}')
        A(f'v_bfe_u32 v3, v{L}, 4, 1'); A(f'v_and_b32 v4, 3, v{L}')
        if perm:
            A('v_and_b32 v5, 1, v4'); A('v_lshrrev_b32 v4, 1, v4'); A('v_lshl_add_u32 v4, v5, 1, v4')
        A('v_lshl_add_u32 v3, v3, 2, v4'); A('v_lshlrev_b32 v3, 3, v3')
        A(f's_mul_i32 s{sT0}, s{sWN}, {self.NI*64}'); A(f'v_add_u32 v3, s{sT0}, v3')
        A(f'v_bfe_u32 v4, v{L}, 2, 2'); A('v_lshlrev_b32 v5, 6, v4'); A('v_xor_b32 v3, v3, v5')
        A(f'v_lshrrev_b32 v5, 5, v{L}'); A('v_lshl_add_u32 v4, v5, 3, v4')
        A(f'v_mul_u32_u24 v4, {self.rowB}, v4'); A(f'v_add_u32 v{vRB}, v3, v4')
        for ni in range(1, self.NI): A(f'v_xor_b32 v{vRB+ni}, {64*ni}, v{vRB}')
        self.trans = trans
    def dmaA(self):
        r = [f's_mov_b32 m0, s{sMA}']
        for q in range(self.nA): r.append(f'buffer_load_dwordx4 v{vDA+q}, s[{gA}:{gA+3}], s{sAo} offen offset:{1024*q} lds')
        r += [f's_add_u32 s{sAo}, s{sAo}, 128', f's_xor_b32 s{sMA}, s{sMA}, {BUF}']
        return r
    def dmaB(self):
        r = [f's_mov_b32 m0, s{sMB}']
        for q in range(self.nB): r.append(f'buffer_load_dwordx4 v{vDB+q}, s[{gB}:{gB+3}], s{sBo_} offen offset:{1024*q} lds')
        r += [f's_add_u32 s{sBo_}, s{sBo_}, s{sBs}', f's_xor_b32 s{sMB}, s{sMB}, {BUF}']
        return r
    def fa(self, st, mi): return vFR + 24 * st + 4 * mi
    def fb(self, st, ni): return vFR + 24 * st + 16 + 4 * ni
    def acc(self, mi, ni): return vACC + 16 * (mi * self.NI + ni)
    def reads(self, st, ks):
        r = []
        for ni in range(self.NI):
            for hf in range(2):
                b = self.fb(st, ni) + 2 * hf
                r.append(f'ds_read_b64_tr_b16 v[{b}:{b+1}], v{vRB+ni} offset:{self.offB + (16*ks + 4*hf)*self.rowB}')
        for mi in range(self.MI):
            a = self.fa(st, mi)
            r.append(f'ds_read_b128 v[{a}:{a+3}], v{vRA+ks} offset:{mi*4096}')
        return r
    def mfmas(self, st, first=False):
        r = []
        for mi in range(self.MI):
            for ni in range(self.NI):
                a, b, c = self.fa(st, mi), self.fb(st, ni), self.acc(mi, ni)
                x, y = (b, a) if self.trans else (a, b)
                r.append(f'v_mfma_f32_32x32x16_bf16 v[{c}:{c+15}], v[{x}:{x+3}], v[{y}:{y+3}], ' + ('0' if first else f'v[{c}:{c+15}]'))
        return r
    def weave(self, mf, fill, per=2):
        A = self.A
        fill = list(fill)
        for m in mf:
            A(m)
            for _ in range(per):
                if fill: A(fill.pop(0))
        for f in fill: A(f)
    def mainloop(self, nstages):
        A = self.A
        A(f's_mul_i32 s{sMA}, s{sW_}, {self.nA*1024}')
        A(f's_mul_i32 s{sMB}, s{sW_}, {self.nB*1024}'); A(f's_add_u32 s{sMB}, s{sMB}, {self.offB}')
        def emit(l):
            A(l[0]); A('s_nop 0')
            for x in l[1:]: A(x)
        emit(self.dmaA()); emit(self.dmaB()); emit(self.dmaA())
        for i in range(self.MI * self.NI * 16): A(f'v_mov_b32 v{vACC+i}, 0')
        A(f's_mov_b32 s{sCnt}, {nstages}')
        A(f's_waitcnt vmcnt({self.nA})')
        A('s_barrier')
        for x in self.reads(0, 0): A(x)
        flip = [f'v_xor_b32 v{vRA+i}, {BUF}, v{vRA+i}' for i in range(4)] + [f'v_xor_b32 v{vRB+i}, {BUF}, v{vRB+i}' for i in range(self.NI)]
        def stage(dB, dA, last):
            A('s_waitcnt lgkmcnt(0)')
            d = self.dmaB() if dB else []
            self.weave(self.mfmas(0), d[:1] + self.reads(1, 1) + d[1:])
            A('s_waitcnt lgkmcnt(0)')
            self.weave(self.mfmas(1), self.reads(0, 2))
            A('s_waitcnt lgkmcnt(0)')
            self.weave(self.mfmas(0), self.reads(1, 3) + flip)
            if last:
                A('s_waitcnt lgkmcnt(0)')
                self.weave(self.mfmas(1), [])
            else:
                A('s_waitcnt vmcnt(0) lgkmcnt(0)')
                A('s_barrier')
                d = self.dmaA() if dA else []
                self.weave(self.mfmas(1), d[:1] + self.reads(0, 0) + d[1:])
        top = A.uid('gl')
        A.label(top)
        stage(True, True, False)
        A(f's_sub_u32 s{sCnt}, s{sCnt}, 1'); A(f's_cmp_gt_u32 s{sCnt}, 2'); A(f's_cbranch_scc1 {top}')
        stage(True, False, False)
        stage(False, False, True)
        assert nstages % 2 == 0 and nstages >= 4
        A('s_nop 15')

import struct
def fhex(f): return '0x%08x' % struct.unpack('<I', struct.pack('<f', f))[0]
LOG2E = 1.4426950408889634
WSR = 's[8:11]'

def pack8(A, dst, regs):
    for q in range(4): A(f'v_cvt_pk_bf16_f32 v{dst+q}, v{regs[2*q]}, v{regs[2*q+1]}')

def epi_frag(G, kind, stflag=''):
    A = G.A; L = vLane
    A(f'v_and_b32 v3, 31, v{L}'); A(f'v_lshrrev_b32 v4, 5, v{L}')
    if kind == 'K':
        A('v_and_b32 v5, 13, v3'); A('v_lshrrev_b32 v6, 4, v3'); A('v_lshl_add_u32 v5, v6, 1, v5')
        A('v_bfe_u32 v6, v3, 1, 1')
    else:
        A('v_and_b32 v5, 15, v3'); A('v_lshrrev_b32 v6, 4, v3')
    A('v_lshl_add_u32 v5, v4, 4, v5'); A('v_lshlrev_b32 v5, 4, v5'); A('v_lshl_add_u32 v7, v6, 10, v5')
    ush = 11 if kind == 'Q' else 12
    base = {'K': KVF, 'V': KVF + 2048, 'Q': QX}[kind]
    A(f's_lshr_b32 s{sT0}, s{sCol}, 5'); A(f's_mul_i32 s{sT1}, s{sWN}, {G.NI}'); A(f's_add_u32 s{sT0}, s{sT0}, s{sT1}'); A(f's_lshl_b32 s{sT0}, s{sT0}, 6')
    A(f's_lshr_b32 s{sT1}, s{sRow}, 5'); A(f's_add_u32 s{sT0}, s{sT0}, s{sT1}'); A(f's_mul_i32 s{sT1}, s{sWM}, {G.MI}'); A(f's_add_u32 s{sT0}, s{sT0}, s{sT1}')
    A(f's_lshl_b32 s{sT0}, s{sT0}, {ush}'); A(f's_add_u32 s{sT0}, s{sT0}, {base}')
    k = 0
    for ni in range(G.NI):
        for mi in range(G.MI):
            c = G.acc(mi, ni)
            A(f's_add_u32 s{sT1}, s{sT0}, {(ni*64 + mi) << ush}')
            for hf in range(2):
                regs = [c + 8*hf + i for i in range(8)] if kind != 'V' else [c + 4*hf + i for i in range(4)] + [c + 8 + 4*hf + i for i in range(4)]
                d = vFR + 4 * (k % 12); k += 1
                pack8(A, d, regs)
                A(f'buffer_store_dwordx4 v[{d}:{d+3}], v7, {WSR}, s{sT1} offen offset:{512*hf} {stflag}')

def epi_rows(G, srd, ld, base, regs_of=None, stflag=''):
    A = G.A; L = vLane
    A(f'v_and_b32 v3, 31, v{L}'); A(f'v_lshrrev_b32 v4, 5, v{L}')
    A(f'v_mul_u32_u24 v3, {ld}, v3'); A('v_lshl_add_u32 v7, v4, 4, v3')
    A(f's_mul_i32 s{sT0}, s{sWM}, {G.MI*32}'); A(f's_add_u32 s{sT0}, s{sT0}, s{sRow}'); A(f's_mul_i32 s{sT0}, s{sT0}, {ld}')
    A(f's_mul_i32 s{sT1}, s{sWN}, {G.NI*32}'); A(f's_add_u32 s{sT1}, s{sT1}, s{sCol}'); A(f's_lshl_b32 s{sT1}, s{sT1}, 1')
    A(f's_add_u32 s{sT0}, s{sT0}, s{sT1}'); A(f's_add_u32 s{sT0}, s{sT0}, {base}')
    k = 0
    for mi in range(G.MI):
        A(f's_add_u32 s{sT1}, s{sT0}, {mi*32*ld}')
        for ni in range(G.NI):
            c = regs_of(mi, ni) if regs_of else G.acc(mi, ni)
            for hf in range(2):
                d = vFR + 4 * (k % 4); k += 1
                pack8(A, d, [c + 8*hf + i for i in range(8)])
                A(f'buffer_store_dwordx4 v[{d}:{d+3}], v7, {srd}, s{sT1} offen offset:{64*ni + 32*hf} {stflag}')

sL2E, sEps, sHiM = 46, 47, 48
def phi_consts(A):
    A(f's_mov_b32 s{sL2E}, {fhex(LOG2E)}'); A(f's_mov_b32 s{sEps}, {fhex(1e-6)}'); A(f's_mov_b32 s{sHiM}, 0xffff0000')
def phi_pack(A, c, dst, t):
    for h in range(2):
        b = c + 8 * h
        for q in range(4): A(f'v_cvt_pk_bf16_f32 v{t+q}, v{b+2*q}, v{b+2*q+1}')
        for q in range(4):
            A(f'v_lshlrev_b32 v{b+2*q}, 16, v{t+q}'); A(f'v_and_b32 v{b+2*q+1}, s{sHiM}, v{t+q}')
        for i in range(8): A(f'v_mul_f32 v{t+i}, s{sL2E}, v{b+i}')
        for i in range(8): A(f'v_exp_f32 v{t+i}, v{t+i}')
        for i in range(8):
            A(f'v_cmp_lt_f32 vcc, 0, v{b+i}'); A(f'v_add_f32 v{b+i}, 1.0, v{b+i}'); A('s_nop 0')
            A(f'v_cndmask_b32 v{b+i}, v{t+i}, v{b+i}, vcc')
        for i in range(8): A(f'v_add_f32 v{b+i}, s{sEps}, v{b+i}')
        for q in range(4): A(f'v_cvt_pk_bf16_f32 v{dst+4*h+q}, v{b+2*q}, v{b+2*q+1}')

def akv_colmap(A, v, t):
    A(f'v_bfe_u32 v{t}, v{v}, 2, 1'); A(f'v_lshlrev_b32 v{t}, 11, v{t}'); A(f'v_add_u32 v{t}, 2048, v{t}')
    A(f'v_lshrrev_b32 v6, 3, v{v}'); A(f'v_lshl_add_u32 v{t}, v6, 6, v{t}')
    A(f'v_and_b32 v{v}, 3, v{v}'); A(f'v_lshl_add_u32 v{v}, v{v}, 4, v{t}')

def epi_akv(G, stflag=''):
    A = G.A
    phi_consts(A)
    vK, vV, vO1, vD, vZ, t = 64, 72, 80, 24, 40, 88
    for i in range(4): A(f'v_mov_b32 v{vO1+i}, 0x3f803f80')
    for mi in range(G.MI):
        phi_pack(A, G.acc(mi, 0), vK, t)
        c = G.acc(mi, 1)
        for q in range(8): A(f'v_cvt_pk_bf16_f32 v{vV+q}, v{c+2*q}, v{c+2*q+1}')
        A('s_nop 1')
        for h in range(2):
            f = mi == 0 and h == 0
            A(f'v_mfma_f32_32x32x16_bf16 v[{vD}:{vD+15}], v[{vK+4*h}:{vK+4*h+3}], v[{vV+4*h}:{vV+4*h+3}], ' + ('0' if f else f'v[{vD}:{vD+15}]'))
            A(f'v_mfma_f32_32x32x16_bf16 v[{vZ}:{vZ+15}], v[{vK+4*h}:{vK+4*h+3}], v[{vO1}:{vO1+3}], ' + ('0' if f else f'v[{vZ}:{vZ+15}]'))
    A(f'v_lshlrev_b32 v7, 4, v{vLane}')
    A(f's_lshr_b32 s{sT0}, s{sRow}, 7'); A(f's_add_u32 s{sT0}, s{sT0}, s{sWM}'); A(f's_lshl_b32 s{sT0}, s{sT0}, 5')
    A(f's_add_u32 s{sT0}, s{sT0}, s{sCol}'); A(f's_add_u32 s{sT0}, s{sT0}, s{sWN}'); A(f's_lshl_b32 s{sT0}, s{sT0}, 13'); A(f's_add_u32 s{sT0}, s{sT0}, {KVP}')
    A(f's_add_u32 s{sT1}, s{sT0}, 4096')
    A('s_nop 7')
    for q in range(4): A(f'buffer_store_dwordx4 v[{vD+4*q}:{vD+4*q+3}], v7, {WSR}, s{sT0} offen offset:{1024*q} {stflag}')
    for q in range(4): A(f'buffer_store_dwordx4 v[{vZ+4*q}:{vZ+4*q+3}], v7, {WSR}, s{sT1} offen offset:{1024*q} {stflag}')

def kv_reduce(A, sUnit, ldflag='', stflag=''):
    A(f'v_lshlrev_b32 v7, 4, v{vLane}')
    A(f's_lshl_b32 s{sT0}, s{sUnit}, 12'); A(f's_add_u32 s{sT0}, s{sT0}, {KVP}')
    for half in range(2):
        for p in range(8):
            for q in range(4):
                d = 128 + 16 * p + 4 * q
                A(f'buffer_load_dwordx4 v[{d}:{d+3}], v7, {WSR}, s{sT0} offen offset:{1024*q} {ldflag}')
            A(f's_add_u32 s{sT0}, s{sT0}, {32*8192}')
        A('s_waitcnt vmcnt(0)')
        for p in range(8):
            for q in range(8):
                d = 128 + 16 * p + 2 * q
                if half == 0 and p == 0: A(f'v_pk_add_f32 v[{64+2*q}:{65+2*q}], v[{d}:{d+1}], 0')
                else: A(f'v_pk_add_f32 v[{64+2*q}:{65+2*q}], v[{64+2*q}:{65+2*q}], v[{d}:{d+1}]')
    for q in range(8): A(f'v_cvt_pk_bf16_f32 v{80+q}, v{64+2*q}, v{65+2*q}')
    A(f's_lshl_b32 s{sT0}, s{sUnit}, 11'); A(f's_add_u32 s{sT0}, s{sT0}, {KVB}')
    for t in range(2): A(f'buffer_store_dwordx4 v[{80+4*t}:{83+4*t}], v7, {WSR}, s{sT0} offen offset:{1024*t} {stflag}')

def epi_aq(G, ldflag='', stflag=''):
    A = G.A; L = vLane
    phi_consts(A)
    A(f'v_and_b32 v3, 51, v{L}'); A(f'v_bfe_u32 v4, v{L}, 2, 1'); A('v_lshl_add_u32 v3, v4, 3, v3'); A(f'v_bfe_u32 v4, v{L}, 3, 1'); A('v_lshl_add_u32 v3, v4, 2, v3')
    A('v_lshlrev_b32 v6, 4, v3')
    A(f's_lshr_b32 s{sT0}, s{sCol}, 5'); A(f's_mul_i32 s{sT1}, s{sWN}, {G.NI}'); A(f's_add_u32 s{sT0}, s{sT0}, s{sT1}')
    A(f's_lshl_b32 s{sT0}, s{sT0}, 12'); A(f's_add_u32 s{sT0}, s{sT0}, {KVB}')
    vKV = 24
    for ni in range(G.NI):
        for q in range(4):
            d = vKV + 16 * ni + 4 * q
            A(f'buffer_load_dwordx4 v[{d}:{d+3}], v6, {WSR}, s{sT0} offen offset:{1024*q} {ldflag}')
        A(f's_add_u32 s{sT0}, s{sT0}, 4096')
    vP, vZ, t = 80, 96, 88
    first = True
    for mi in range(G.MI):
        for ni in range(G.NI):
            c = G.acc(mi, ni)
            phi_pack(A, c, vP, t)
            if first: A('s_waitcnt vmcnt(0)'); first = False
            A('s_nop 1')
            k = vKV + 16 * ni
            A(f'v_mfma_f32_32x32x16_bf16 v[{vZ}:{vZ+15}], v[{k+8}:{k+11}], v[{vP}:{vP+3}], 0')
            A(f'v_mfma_f32_32x32x16_bf16 v[{vZ}:{vZ+15}], v[{k+12}:{k+15}], v[{vP+4}:{vP+7}], v[{vZ}:{vZ+15}]')
            A(f'v_mfma_f32_32x32x16_bf16 v[{c}:{c+15}], v[{k}:{k+3}], v[{vP}:{vP+3}], 0')
            A(f'v_mfma_f32_32x32x16_bf16 v[{c}:{c+15}], v[{k+4}:{k+7}], v[{vP+4}:{vP+7}], v[{c}:{c+15}]')
            A('s_nop 9')
            A(f'v_add_f32 v{t}, s{sEps}, v{vZ}'); A(f'v_rcp_f32 v{t}, v{t}'); A('s_nop 0')
            for i in range(16): A(f'v_mul_f32 v{c+i}, v{c+i}, v{t}')
    epi_rows(G, WSR, 2048, OA, stflag=stflag)
```

```python
MB = 1 << 20
WS_BYTES = 256 * MB
QX = 0
KX = 16 * MB
VXF = 32 * MB
KVF = 16 * MB
OB = 48 * MB
KM = 64 * MB
VMF = 68 * MB
CBUF = 72 * MB
ABUF = 76 * MB
BBUF = 77 * MB
DBUF = 77 * MB + 256 * 1024
OA = 78 * MB
KVP = 82 * MB
KVB = 86 * MB
PROF = 96 * MB
KA = dict(A_x=0, A_wqkv=8, A_wo=16, B_x=24, B_mem0=32, B_Wq=40, B_Wk=48, B_Wv=56, B_Wo=64, seg=72, out=80, dbg=88, ws=96)
```

```python
from asmlib import *
from layout import *

L_MEM = 0
L_QP = 16384
QP_ROW = 144
QP_PART = 16 * QP_ROW
L_VP = 26624
L_RED = 30720
L_PF = 34816
L_TICKET = 131072
REC_LDS = 131072 + 256

S_WS = 8
S_W = 12
S_M0 = 16
S_DBG = 20
sX, sC, sW, sH, sJ, sStep, sBud = 24, 25, 26, 27, 28, 29, 30
sA, sB, sCc, sD = 31, 32, 33, 34
sKX, sVX, sSave = 35, 36, 37
sT0, sT1, sT2 = 38, 39, 40
sSent = 41
sScale = 42
sPar = 43
sAo, sBo, sDo = 44, 45, 46
sP = 48
sPF = 64

def gen_rec(A, par=0, prof=None, dD=32, dB=32, dC=112, dA=24, gap=12, nsteps=64, exit_label='L_end', nopf=False, nosave=False, dH=60, dP=36, prio=2, rt=False, vfill=True, fillw=10, dC2=64, flip=1, only=None, sparse=2, dC3=0, ncopy=1, acc=False, warm=2):
    stamps = []
    def stamp(name):
        if prof is None or (only and name not in only): return
        if name not in stamps: stamps.append(name)
        r = sPF + 2 * stamps.index(name)
        assert r + 1 < 100
        lab = A.uid('st')
        A(f's_cmp_lg_u32 s{sStep}, {prof}'); A(f's_cbranch_scc1 {lab}')
        A(f"{'s_memrealtime' if rt else 's_memtime'} s[{r}:{r+1}]"); A('s_waitcnt lgkmcnt(0)')
        A.label(lab)
    def astamp(name, wave):
        if not acc: return
        if name not in stamps: stamps.append(name)
        r = sPF + 2 * stamps.index(name)
        lab = A.uid('as')
        A(f's_cmp_lg_u32 s{sW}, {wave}'); A(f's_cbranch_scc1 {lab}')
        A(f's_memtime s[{sP}:{sP+1}]')
        A(f's_sub_u32 s{sP+2}, s{sStep}, 4'); A(f's_cmp_ge_u32 s{sP+2}, 56'); A('s_waitcnt lgkmcnt(0)')
        A(f's_cselect_b32 s{sP}, 0, s{sP}'); A(f's_add_u32 s{r}, s{r}, s{sP}')
        A.label(lab)
    def delay(n):
        while n > 0:
            k = min(n, 16); A(f's_nop {k-1}'); n -= k
    def vdelay(n):
        if not vfill: return delay(n)
        while n > 0:
            A('v_mov_b32 v0, v0'); n -= 1
            k = min(n, sparse)
            if k: A(f's_nop {k-1}'); n -= k
    def check(regs, tmp, retry):
        A(f'v_max3_u32 v{tmp}, v{regs[0]}, v{regs[1]}, v{regs[2]}')
        rest = regs[3:]
        while len(rest) >= 2:
            A(f'v_max3_u32 v{tmp}, v{tmp}, v{rest[0]}, v{rest[1]}'); rest = rest[2:]
        if rest: A(f'v_max_u32 v{tmp}, v{tmp}, v{rest[0]}')
        A(f'v_cmp_eq_u32 vcc, -1, v{tmp}')
        A(f's_cbranch_vccnz {retry}')
    def poll_head():
        top = A.uid('poll')
        A.label(top)
        A(f's_sub_u32 s{sBud}, s{sBud}, 1'); A(f's_cbranch_scc1 {exit_label}')
        return top
    WS = f's[{S_WS}:{S_WS+3}]'
    A(f's_load_dwordx2 s[{sP}:{sP+1}], s[0:1], {KA["B_Wq"]}')
    A(f's_load_dwordx2 s[{sP+2}:{sP+3}], s[0:1], {KA["B_Wk"]}')
    A(f's_load_dwordx2 s[{sP+4}:{sP+5}], s[0:1], {KA["B_Wv"]}')
    A(f's_load_dwordx2 s[{sP+6}:{sP+7}], s[0:1], {KA["B_Wo"]}')
    A(f's_load_dwordx2 s[{sP+8}:{sP+9}], s[0:1], {KA["B_mem0"]}')
    A('v_lshrrev_b32 v1, 6, v0')
    A('v_and_b32 v2, 63, v0')
    A(f'v_readfirstlane_b32 s{sW}, v1')
    A('v_and_b32 v3, 15, v2')
    A('v_lshrrev_b32 v4, 4, v2')
    A('v_bfe_u32 v5, v2, 3, 1')
    A('v_and_b32 v6, 7, v2')
    A('v_lshlrev_b32 v7, 4, v2')
    A(f's_lshr_b32 s{sH}, s{sC}, 2'); A(f's_lshl_b32 s{sT0}, s{sX}, 3'); A(f's_add_u32 s{sH}, s{sH}, s{sT0}')
    A(f's_and_b32 s{sJ}, s{sC}, 3')
    A(f's_mov_b32 s{sBud}, 0x40000')
    A(f's_mov_b32 s{sSent}, 0xfffffffe')
    A(f's_mov_b32 s{sScale}, {float_hex(128 ** -0.5 * 1.4426950408889634)}')
    A(f's_mov_b32 s{sPar}, {par * 8192}')
    A(f's_mov_b32 s{sStep}, 0')
    if prof is not None:
        for r in range(sPF, 100): A(f's_mov_b32 s{r}, 0')
    A('s_waitcnt lgkmcnt(0)')
    srd(A, S_M0, sP + 8, 8 * 1024 * 2)
    def inbox(i):
        A(f's_xor_b32 s{sT0}, s{sX}, {i}')
        A(f's_lshl_b32 s{sT1}, s{sT0}, 12'); A(f's_and_b32 s{sT1}, s{sT1}, {8192 * flip}'); A(f's_xor_b32 s{sT1}, s{sT1}, s{sPar}')
        A(f's_lshl_b32 s{sT0}, s{sT0}, 5'); A(f's_add_u32 s{sT0}, s{sT0}, s{sC}'); A(f's_lshl_b32 s{sT0}, s{sT0}, 15')
        A(f's_add_u32 s{sT0}, s{sT0}, s{sT1}')
    for i in range(4): A(f'v_mov_b32 v{8+i}, -1')
    inbox(0)
    A(f's_lshl_b32 s{sT1}, s{sW}, 10'); A(f's_add_u32 s{sT0}, s{sT0}, s{sT1}')
    A(f's_add_u32 s{sT0}, s{sT0}, {CBUF}')
    A(f'buffer_store_dwordx4 v[8:11], v7, {WS}, s{sT0} offen sc1')
    A(f's_add_u32 s{sT0}, s{sT0}, 16384')
    A(f'buffer_store_dwordx4 v[8:11], v7, {WS}, s{sT0} offen sc1')
    lab = A.uid('ini')
    A(f's_cmp_ge_u32 s{sW}, 2'); A(f's_cbranch_scc1 {lab}')
    A(f's_lshl_b32 s{sT0}, s{sW}, 18'); A(f's_lshl_b32 s{sT1}, s{sH}, 13'); A(f's_add_u32 s{sT0}, s{sT0}, s{sT1}'); A(f's_add_u32 s{sT0}, s{sT0}, {ABUF}')
    A(f's_lshl_b32 s{sT1}, s{sJ}, 10'); A(f's_add_u32 s{sT1}, s{sT1}, s{sT0}')
    A(f'buffer_store_dwordx4 v[8:11], v7, {WS}, s{sT1} offen')
    A(f's_lshl_b32 s{sT1}, s{sJ}, 8'); A(f's_add_u32 s{sT1}, s{sT1}, s{sT0}'); A(f's_add_u32 s{sT1}, s{sT1}, 4096')
    A('v_lshlrev_b32 v12, 2, v2')
    A(f'buffer_store_dword v8, v12, {WS}, s{sT1} offen')
    A('v_lshlrev_b32 v12, 3, v2')
    A(f's_lshl_b32 s{sT0}, s{sW}, 16'); A(f's_lshl_b32 s{sT1}, s{sX}, 14'); A(f's_add_u32 s{sT0}, s{sT0}, s{sT1}')
    A(f's_lshl_b32 s{sT1}, s{sC}, 9'); A(f's_add_u32 s{sT0}, s{sT0}, s{sT1}')
    A(f's_add_u32 s{sT1}, s{sT0}, {BBUF}')
    A(f'buffer_store_dwordx2 v[8:9], v12, {WS}, s{sT1} offen')
    A(f's_add_u32 s{sT1}, s{sT0}, {DBUF}')
    A(f'buffer_store_dwordx2 v[8:9], v12, {WS}, s{sT1} offen')
    A.label(lab)
    A('s_waitcnt vmcnt(0)')
    A('s_barrier')
    lab = A.uid('rdy')
    A(f's_cmp_lg_u32 s{sW}, 0'); A(f's_cbranch_scc1 {lab}')
    A('v_mov_b32 v12, 64'); A('v_mov_b32 v13, 1')
    A('s_mov_b64 exec, 1')
    A(f'buffer_atomic_add v13, v12, s[{S_DBG}:{S_DBG+3}], 0 offen sc1')
    A('s_mov_b64 exec, -1')
    A.label(lab)
    A('v_lshrrev_b32 v12, 2, v2'); A('v_and_b32 v13, 3, v2'); A('v_lshlrev_b32 v13, 4, v13')
    A('v_bfe_u32 v14, v12, 1, 1'); A('v_lshlrev_b32 v14, 3, v14'); A('v_lshrrev_b32 v15, 2, v12'); A('v_lshl_add_u32 v14, v15, 1, v14')
    A('v_and_b32 v15, 1, v12'); A('v_add_u32 v14, v14, v15')
    A('v_lshl_add_u32 v14, v14, 13, v13')
    A(f's_lshl_b32 s{sT0}, s{sH}, 8'); A(f's_lshl_b32 s{sT1}, s{sJ}, 6'); A(f's_add_u32 s{sT0}, s{sT0}, s{sT1}')
    A(f'v_add_u32 v14, s{sT0}, v14')
    A('v_and_b32 v15, 1, v12'); A('v_lshlrev_b32 v15, 4, v15'); A('v_lshrrev_b32 v16, 3, v2'); A('v_add_u32 v15, v15, v16')
    A('v_lshl_add_u32 v15, v15, 11, v13')
    A(f's_lshl_b32 s{sT0}, s{sX}, 21'); A(f's_lshl_b32 s{sT1}, s{sC}, 6'); A(f's_add_u32 s{sT0}, s{sT0}, s{sT1}')
    A(f'v_add_u32 v15, s{sT0}, v15')
    def sel_srd(pa, pb):
        A(f's_cmp_lt_u32 s{sW}, 4')
        A(f's_cselect_b32 s{S_W}, s{pa}, s{pb}')
        A(f's_cselect_b32 s{S_W+1}, s{pa+1}, s{pb+1}')
        A(f's_and_b32 s{S_W+1}, s{S_W+1}, 0xffff')
        A(f's_mov_b32 s{S_W+2}, {8*MB}')
        A(f's_mov_b32 s{S_W+3}, 0x20000')
    def dma_nat():
        A(f's_and_b32 s{sT0}, s{sW}, 3'); A(f's_lshl_b32 s{sT1}, s{sT0}, 21')
        A(f's_lshl_b32 s{sT2}, s{sW}, 14')
        for k in range(16):
            A(f's_mov_b32 m0, s{sT2}')
            A(f's_add_u32 s{sT2}, s{sT2}, 1024')
            A(f'buffer_load_dwordx4 v14, s[{S_W}:{S_W+3}], s{sT1} offen lds')
            A(f's_add_u32 s{sT1}, s{sT1}, {16*8192}')
    sel_srd(sP, sP + 2)
    dma_nat()
    A('v_bfe_u32 v16, v2, 2, 2'); A('v_lshl_add_u32 v16, v4, 3, v16'); A('v_lshlrev_b32 v16, 6, v16')
    A('v_and_b32 v17, 3, v2'); A('v_lshl_add_u32 v16, v17, 3, v16')
    A('s_waitcnt vmcnt(0)')
    A('s_barrier')
    lab = A.uid('w1')
    A(f's_cmp_ge_u32 s{sW}, 4'); A(f's_cbranch_scc1 {lab}')
    def load_pair(addrX, offX, addrY, offY, pre, dst):
        for p in range(4):
            A(f'ds_read_b64_tr_b16 v[{32+2*p}:{33+2*p}], v{addrX} offset:{offX + (p>>1)*2048 + (p&1)*256}')
            A(f'ds_read_b64_tr_b16 v[{40+2*p}:{41+2*p}], v{addrY} offset:{offY + (p>>1)*2048 + (p&1)*256}')
        A('s_waitcnt lgkmcnt(0)')
        mv = 'v_mov_b32 v'
        if pre == 'a': dst += 128
        for r in range(8):
            A(f'{mv}{dst+r}, v{(32 if r % 2 == 0 else 40) + r}')
            A(f'{mv}{dst+8+r}, v{(40 if r % 2 == 0 else 32) + r}')
    A(f's_lshl_b32 s{sT0}, s{sW}, 14')
    A(f'v_add_u32 v17, s{sT0}, v16'); A('v_add_u32 v19, 65536, v17')
    for i in range(4):
        for t in range(2):
            load_pair(17, i * 4096 + t * 32, 19, i * 4096 + t * 32, 'a', (2 * i + t) * 16)
    A('s_waitcnt lgkmcnt(0)')
    A.label(lab)
    A('s_barrier')
    sel_srd(sP + 4, sP + 6)
    lab = A.uid('w2'); lab2 = A.uid('w2e')
    A(f's_cmp_ge_u32 s{sW}, 4'); A(f's_cbranch_scc1 {lab}')
    dma_nat()
    A(f's_branch {lab2}')
    A.label(lab)
    A(f's_and_b32 s{sT0}, s{sW}, 3'); A(f's_lshl_b32 s{sT1}, s{sT0}, 19')
    A(f's_lshl_b32 s{sT2}, s{sW}, 14')
    for k in range(16):
        A(f's_mov_b32 m0, s{sT2}')
        A(f's_add_u32 s{sT2}, s{sT2}, 1024')
        A(f'buffer_load_dwordx4 v15, s[{S_W}:{S_W+3}], s{sT1} offen lds')
        A(f's_add_u32 s{sT1}, s{sT1}, {(8 if k % 2 == 0 else 24) * 2048}')
    A.label(lab2)
    A('s_waitcnt vmcnt(0)')
    A('s_barrier')
    lab = A.uid('w3'); lab2 = A.uid('w3e')
    A(f's_lshl_b32 s{sT0}, s{sW}, 14')
    A(f'v_add_u32 v17, s{sT0}, v16')
    A(f's_cmp_lt_u32 s{sW}, 4'); A(f's_cbranch_scc1 {lab}')
    for dst, pre in ((0, 'a'), (64, 'v')):
        for i in range(4):
            load_pair(17, i * 4096, 17, i * 4096 + 32, pre, dst + i * 16)
        if pre == 'a':
            A(f's_branch {lab2}'); A.label(lab)
    A.label(lab2)
    A('s_waitcnt lgkmcnt(0)')
    lab = A.uid('rw')
    A(f's_cmp_lg_u32 s{sW}, 0'); A(f's_cbranch_scc1 {lab}')
    A('v_mov_b32 v12, 64')
    top = poll_head()
    A(f'buffer_load_dword v13, v12, s[{S_DBG}:{S_DBG+3}], 0 offen sc1')
    A('s_waitcnt vmcnt(0)')
    A('v_cmp_gt_u32 vcc, 128, v13')
    A(f's_cbranch_vccnz {top}')
    A.label(lab)
    A('s_barrier')
    A(f's_mov_b32 s{sA}, {ABUF}'); A(f's_mov_b32 s{sB}, {BBUF}'); A(f's_mov_b32 s{sCc}, {CBUF}')
    A(f's_mov_b32 s{sBo}, {BBUF + 65536}')
    A(f's_mov_b32 s{sD}, {DBUF + 65536}')
    A(f's_mov_b32 s{sDo}, {DBUF}')
    A(f's_lshl_b32 s{sKX}, s{sX}, 5'); A(f's_add_u32 s{sKX}, s{sKX}, s{sC}'); A(f's_lshl_b32 s{sKX}, s{sKX}, 18'); A(f's_add_u32 s{sKX}, s{sKX}, {KVF}'); A(f's_mov_b32 s{sSave}, 0')
    def advance():
        A(f's_xor_b32 s{sA}, s{sA}, {1<<18}'); A(f's_xor_b32 s{sB}, s{sB}, 65536'); A(f's_xor_b32 s{sBo}, s{sBo}, 65536')
        A(f's_xor_b32 s{sCc}, s{sCc}, 16384'); A(f's_xor_b32 s{sD}, s{sD}, 65536'); A(f's_xor_b32 s{sDo}, s{sDo}, 65536')
        if not nosave: A(f's_add_u32 s{sSave}, s{sSave}, 65536')
        if not nopf: A(f's_add_u32 s{sKX}, s{sKX}, 4096')
        A(f's_add_u32 s{sStep}, s{sStep}, 1')
    assert (ABUF >> 18) & 1 == 0 and (BBUF >> 16) & 1 == 0 and (DBUF >> 16) & 1 == 0 and (CBUF >> 14) & 1 == 0
    vIdx = 20
    A(f'v_mov_b32 v{vIdx}, 0x4444'); A('v_mov_b32 v12, 0xeeee'); A('v_cmp_eq_u32 vcc, 1, v5'); A('s_nop 1')
    A(f'v_cndmask_b32 v{vIdx}, v{vIdx}, v12, vcc')
    A('v_and_b32 v18, 1, v4'); A('v_lshlrev_b32 v18, 2, v18'); A('v_lshrrev_b32 v12, 1, v4'); A('v_add_u32 v18, v18, v12')
    vGoff = 21
    sU = 47
    sPend, sTodo, sFc = sT0, sT1, 58
    A(f's_and_b32 s{sU}, s{sW}, 3')
    A(f's_mov_b32 s{sFc}, 0')
    A(f's_lshl_b32 s{sT0}, s{sU}, 12'); A(f's_lshl_b32 s{sT1}, s{sX}, 14'); A(f's_add_u32 s{sT0}, s{sT0}, s{sT1}')
    A(f'v_add_u32 v{vGoff}, s{sT0}, v7')
    vM = 32
    vN = 48
    vT = 8
    vId2 = 1
    A(f'v_xor_b32 v{vId2}, 0xaaaa, v{vIdx}')
    tails = []
    def smf(acc, i, w, second):
        src = (vN if second else vM) + 4 * i
        return f'v_smfmac_f32_16x16x64_bf16 v[{acc}:{acc+3}], v[{src}:{src+3}], {w}, v{vId2 if second else vIdx}'
    def rot(i, q): return f'v_mov_b32_dpp v{vN+4*i+q}, v{vM+4*i+q} row_ror:8 row_mask:0xf bank_mask:0xf'
    def gather(soff, ntile, vacc, name, gp):
        def ld(i): A(f'buffer_load_dwordx4 v[{vM+4*i}:{vM+4*i+3}], v{vGoff}, {WS}, s{soff} offen offset:{1024*i} sc1')
        def chk(i):
            b = vM + 4 * i
            A(f'v_max3_u32 v{vT}, v{b}, v{b+1}, v{b+2}'); A(f'v_max_u32 v{vT}, v{vT}, v{b+3}'); A(f'v_cmp_eq_u32 vcc, -1, v{vT}')
        def X(i): return [smf(vacc + 4 * T, i, f'v[{128+(ntile*i+T)*16}:{128+(ntile*i+T)*16+7}]', False) for T in range(ntile)]
        def Y(i): return [smf(vacc + 4 * T, i, f'v[{128+(ntile*i+T)*16+8}:{128+(ntile*i+T)*16+15}]', True) for T in range(ntile)]
        def mm(i): return [rot(i, q) for q in range(4)] + X(i) + (['s_nop 0'] if ntile == 1 else []) + Y(i)
        done = A.uid('gdone'); ent = [A.uid('gent') for _ in range(4)]
        for i in range(4):
            ld(i)
            vdelay(gp if i < 3 else fillw)
        A('s_waitcnt vmcnt(3)')
        stamp(f'{name}0')
        chk(0)
        for q in range(4): A(rot(0, q))
        A(f's_cbranch_vccnz {ent[0]}')
        for i in range(4):
            x, y = X(i), Y(i)
            if ntile == 2:
                A(x[0])
                if i > 0: A(rot(i, 2))
                A(x[1])
                if i > 0: A(rot(i, 3))
                if i < 3:
                    A(f's_waitcnt vmcnt({2-i})')
                    if i == 2: stamp(f'{name}3')
                    chk(i + 1)
                    A(y[0]); A(rot(i + 1, 0)); A(y[1]); A(rot(i + 1, 1))
                    A(f's_cbranch_vccnz {ent[i+1]}')
                else:
                    A('s_nop 1'); A(y[0]); A(y[1])
            else:
                A(x[0])
                if i < 3:
                    A(y[0])
                    A(f's_waitcnt vmcnt({2-i})')
                    if i == 2: stamp(f'{name}3')
                    chk(i + 1)
                    for q in range(4): A(rot(i + 1, q))
                    A(f's_cbranch_vccnz {ent[i+1]}')
                else:
                    A(y[0])
        A.label(done)
        def tail():
            base = A.uid('q')
            def nxt(mask, pos):
                for k in range(1, 5):
                    p = (pos + k) & 3
                    if mask >> p & 1: return p
            def st(mask, pos): return f'{base}_{mask}_{pos}'
            def bad(mask, pos):
                ld(pos)
                A(f's_sub_u32 s{sBud}, s{sBud}, 1'); A(f's_cbranch_scc1 {exit_label}')
                A(f's_branch {st(mask, nxt(mask, pos))}')
            for i in range(4):
                A.label(ent[i]); bad((15 << i) & 15, i)
            for mask in range(1, 16):
                n = bin(mask).count('1')
                for pos in range(4):
                    if not mask >> pos & 1: continue
                    bl = A.uid('bad')
                    if n == 1:
                        A.label(bl); ld(pos)
                        A(f's_sub_u32 s{sBud}, s{sBud}, 1'); A(f's_cbranch_scc1 {exit_label}')
                    A.label(st(mask, pos))
                    A(f's_waitcnt vmcnt({n-1})')
                    chk(pos)
                    for q in range(4): A(rot(pos, q))
                    A(f's_cbranch_vccnz {bl}')
                    for x in X(pos) + Y(pos): A(x)
                    m2 = mask & ~(1 << pos)
                    A(f's_branch {st(m2, nxt(m2, pos)) if m2 else done}')
                    if n > 1:
                        A.label(bl); bad(mask, pos)
        tails.append(tail)
    def emit_tails():
        for t in tails: t()
        tails.clear()
    def last_check(lab):
        A(f's_cmp_eq_u32 s{sStep}, {nsteps-1}'); A(f's_cbranch_scc1 {lab}')
    A(f's_cmp_ge_u32 s{sW}, 4'); A('s_cbranch_scc1 L_vo')

    vPq, vVPw = 22, 23
    vACC = 24
    A(f's_mul_i32 s{sT0}, s{sW}, {QP_PART}'); A(f's_add_u32 s{sT0}, s{sT0}, {L_QP}')
    A(f'v_mul_u32_u24 v{vPq}, {4*QP_ROW}, v4'); A(f'v_lshl_add_u32 v{vPq}, v3, 2, v{vPq}'); A(f'v_add_u32 v{vPq}, s{sT0}, v{vPq}')
    A(f's_lshl_b32 s{sT0}, s{sU}, 10'); A(f's_add_u32 s{sT1}, s{sT0}, {L_VP}')
    A('v_lshrrev_b32 v8, 1, v4'); A('v_lshl_add_u32 v8, v8, 4, v3'); A('v_lshlrev_b32 v8, 5, v8'); A('v_and_b32 v9, 1, v4')
    A(f'v_lshl_add_u32 v{vVPw}, v9, 4, v8'); A(f'v_add_u32 v{vVPw}, s{sT1}, v{vVPw}')
    vK0, vVxo, vVr, vVo, vPc, vAr0, vAr1 = 12, 13, 14, 15, 16, 17, 18
    A(f'v_mov_b32 v{vK0}, v7')
    A(f's_lshl_b32 s{sT0}, s{sH}, 8'); A(f's_lshl_b32 s{sT1}, s{sJ}, 6'); A(f's_add_u32 s{sT0}, s{sT0}, s{sT1}')
    A(f's_lshl_b32 s{sT0}, s{sT0}, 3'); A(f's_add_u32 s{sT0}, s{sT0}, {VMF}')
    A(f'v_lshlrev_b32 v{vVo}, 4, v3'); A(f'v_lshl_add_u32 v{vVo}, v4, 2, v{vVo}'); A(f'v_add_u32 v{vVo}, s{sT0}, v{vVo}')
    A(f'v_lshlrev_b32 v8, 3, v4'); A(f'v_lshl_add_u32 v{vVr}, v3, 5, v8'); A(f'v_add_u32 v{vVr}, {L_VP}, v{vVr}')
    A(f's_lshl_b32 s{sT0}, s{sX}, 14'); A(f's_lshl_b32 s{sT1}, s{sC}, 9'); A(f's_add_u32 s{sT0}, s{sT0}, s{sT1}')
    A(f'v_lshlrev_b32 v{vPc}, 3, v2'); A(f'v_add_u32 v{vPc}, s{sT0}, v{vPc}')
    A(f's_lshl_b32 s{sT0}, s{sH}, 13'); A(f's_lshl_b32 s{sT1}, s{sJ}, 10'); A(f's_add_u32 s{sT1}, s{sT0}, s{sT1}'); A(f'v_add_u32 v{vAr0}, s{sT1}, v7')
    A(f's_lshl_b32 s{sT1}, s{sJ}, 8'); A(f's_add_u32 s{sT1}, s{sT0}, s{sT1}'); A(f's_add_u32 s{sT1}, s{sT1}, 4096')
    A(f'v_lshlrev_b32 v{vAr1}, 2, v2'); A(f'v_add_u32 v{vAr1}, s{sT1}, v{vAr1}')
    def prefetch():
        A(f's_mov_b32 m0, {L_PF}'); A('s_nop 0')
        for q in range(4): A(f'buffer_load_dwordx4 v{vK0}, {WS}, s{sKX} offen offset:{1024*q} lds')
        A('s_waitcnt vmcnt(0)')
    def warmup(part=0):
        A(f's_min_u32 s{sT0}, s{sW}, 2'); A(f's_mul_i32 s{sT0}, s{sT0}, {128*11}'); A(f's_add_u32 s{sT0}, s{sT0}, s{sKX}')
        A(f's_add_u32 s{sT0}, s{sT0}, {4096*warm}')
        for q in range(11): A(f's_buffer_load_dword s{sVX}, {WS}, s{sT0} offset:{128*q + 64*part}')
    vOn = 4
    for i in range(4): A(f'v_mov_b32 v{vOn+i}, -1')
    lab = A.uid('pf0')
    A(f's_cmp_lg_u32 s{sW}, 1'); A(f's_cbranch_scc1 {lab}')
    prefetch()
    A.label(lab)
    A.label('L_qk_loop')
    for i in range(8): A(f'v_mov_b32 v{vACC+i}, 0')
    A('s_barrier')
    stamp('b5')
    vdelay(dD)
    gather(sD, 2, vACC, 'D', gap)
    A('s_nop 6')
    for T in range(2):
        for q in range(2):
            A(f'ds_write2_b32 v{vPq}, v{vACC+4*T+2*q}, v{vACC+4*T+2*q+1} offset0:{16*T + 2*q*QP_ROW//4} offset1:{16*T + (2*q+1)*QP_ROW//4}')
    for i in range(4): A(f'v_mov_b32 v{vT+i}, 0')
    A('s_waitcnt lgkmcnt(0)')
    stamp('pre1')
    A('s_barrier')
    stamp('b1')
    for i in range(4):
        for sec in range(2):
            w = 64 + i * 16 + 8 * sec
            A(smf(vT, i, f'v[{w}:{w+7}]', sec))
    A('s_nop 7')
    A(f'ds_write_b128 v{vVPw}, v[{vT}:{vT+3}]')
    A('s_waitcnt lgkmcnt(0)')
    stamp('pre3')
    A('s_barrier')
    astamp('a3', 2)
    nv = A.uid('nv')
    A(f's_cmp_lg_u32 s{sW}, 3'); A(f's_cbranch_scc1 {nv}')
    delay(dH)
    for t in range(2):
        for u in range(4):
            A(f'ds_read_b64 v[{vM+8*t+2*u}:{vM+8*t+2*u+1}], v{vVr} offset:{u*1024 + t*512}')
    A('s_waitcnt lgkmcnt(0)')
    for t in range(2):
        b = vM + 8 * t
        A(f'v_pk_add_f32 v[{b}:{b+1}], v[{b}:{b+1}], v[{b+2}:{b+3}]')
        A(f'v_pk_add_f32 v[{b+4}:{b+5}], v[{b+4}:{b+5}], v[{b+6}:{b+7}]')
    for t in range(2):
        b = vM + 8 * t
        A(f'v_pk_add_f32 v[{b}:{b+1}], v[{b}:{b+1}], v[{b+4}:{b+5}]')
    A(f'v_cvt_pk_bf16_f32 v{vT+2}, v{vM}, v{vM+1}'); A(f'v_cvt_pk_bf16_f32 v{vT+3}, v{vM+8}, v{vM+9}')
    def vm_save():
        A(f'buffer_store_dword v{vT+2}, v{vVo}, {WS}, s{sSave} offen')
        A(f'buffer_store_dword v{vT+3}, v{vVo}, {WS}, s{sSave} offen offset:256')
    last_check('L_w3_last')
    A.label(nv)
    last_check('L_rec_done')
    if warm:
        n2 = A.uid('n2')
        A(f's_cmp_eq_u32 s{sW}, 2'); A(f's_cbranch_scc1 {n2}')
        warmup()
        A.label(n2)
    A('s_barrier')
    astamp('aB', 2)
    if warm:
        n2 = A.uid('n2')
        A(f's_cmp_eq_u32 s{sW}, 2'); A(f's_cbranch_scc1 {n2}')
        warmup(1)
        A.label(n2)
    A('s_barrier')
    astamp('a4', 2)
    n1 = A.uid('n1'); n3 = A.uid('n3')
    A(f's_cmp_lg_u32 s{sW}, 1'); A(f's_cbranch_scc1 {n1}')
    delay(dP)
    if not nopf: A(f's_add_u32 s{sKX}, s{sKX}, 4096')
    prefetch()
    if not nopf: A(f's_sub_u32 s{sKX}, s{sKX}, 4096')
    A.label(n1)
    A(f's_cmp_lg_u32 s{sW}, 3'); A(f's_cbranch_scc1 {n3}')
    delay(dP)
    A(f'buffer_store_dwordx2 v[{vOn}:{vOn+1}], v{vPc}, {WS}, s{sD} offen')
    A(f'buffer_store_dwordx4 v[{vOn}:{vOn+3}], v{vAr0}, {WS}, s{sA} offen')
    A(f'buffer_store_dword v{vOn}, v{vAr1}, {WS}, s{sA} offen')
    vm_save()
    A.label(n3)
    advance()
    A('s_branch L_qk_loop')
    A.label('L_w3_last')
    vm_save()
    A('s_branch L_rec_done')
    emit_tails()

    A.label('L_vo')
    if prio: A(f's_setprio {prio}')
    vRw, vRr, vCp, vDp = 22, 23, 24, 27
    vF = 48
    vAC = 96
    vU = 64
    A(f's_lshl_b32 s{sT0}, s{sU}, 10')
    A(f's_add_u32 s{sT1}, s{sT0}, {L_RED}'); A(f'v_lshlrev_b32 v{vRw}, 2, v2'); A(f'v_add_u32 v{vRw}, s{sT1}, v{vRw}')
    vCi = 19
    inbox(0); A(f'v_add_u32 v{vCi}, s{sT0}, v7')
    for i in range(1, 4):
        inbox(i); A(f'v_add_u32 v{vCp + i - 1}, s{sT0}, v7')
    A('v_and_b32 v14, 4, v3'); A('v_add_u32 v14, v14, v4')
    A('v_lshlrev_b32 v15, 4, v5'); A('v_add_u32 v15, v15, v14')
    A('v_and_b32 v16, 2, v3'); A('v_lshl_add_u32 v15, v16, 2, v15')
    A('v_lshlrev_b32 v15, 4, v15'); A('v_and_b32 v16, 1, v3'); A('v_lshl_add_u32 v15, v16, 3, v15')
    A(f's_lshl_b32 s{sT0}, s{sX}, 14'); A(f's_lshl_b32 s{sT1}, s{sC}, 9'); A(f's_add_u32 s{sT0}, s{sT0}, s{sT1}'); A(f'v_add_u32 v{vDp}, s{sT0}, v15')
    vRb, vOn2 = 29, 100
    A('v_mov_b32 v28, 0'); A('v_mov_b32 v30, 0'); A('v_mov_b32 v31, 0'); A('v_mov_b32 v12, 0')
    A(f'v_lshlrev_b32 v{vRb}, 3, v2'); A(f'v_add_u32 v{vRb}, s{sT0}, v{vRb}')
    for i in range(4): A(f'v_mov_b32 v{vOn2+i}, -1')
    A('v_lshlrev_b32 v14, 11, v14'); A('v_lshl_add_u32 v14, v5, 5, v14'); A('v_and_b32 v16, 3, v3'); A('v_lshl_add_u32 v14, v16, 3, v14')
    A(f's_lshl_b32 s{sT1}, s{sC}, 6'); A(f'v_add_u32 v14, s{sT1}, v14')
    A(f'buffer_load_dwordx2 v[{vU}:{vU+1}], v14, s[{S_M0}:{S_M0+3}], 0 offen')
    vRr0, vPub, vPub2, vKo = 28, 29, 30, 31
    vKX = 100
    vR = 108
    vS = 36
    sMhi, sMm = 60, 62
    vAp0, vAp1, vVr, vVxr, vOp, vIdp = 28, 29, 30, 31, 12, 13
    vB = 100
    vOne = 116
    vP = 124
    sEv, sOd = 60, 62
    l6 = A.uid('s6'); le = A.uid('se')
    A(f's_cmp_eq_u32 s{sW}, 6'); A(f's_cbranch_scc1 {l6}')
    A(f's_cmp_lg_u32 s{sW}, 4'); A(f's_cbranch_scc1 {le}')
    A(f'v_mul_u32_u24 v{vRr0}, {QP_ROW}, v3'); A(f'v_lshl_add_u32 v{vRr0}, v4, 5, v{vRr0}'); A(f'v_add_u32 v{vRr0}, {L_QP}, v{vRr0}')
    A(f's_lshl_b32 s{sT0}, s{sH}, 8'); A(f's_lshl_b32 s{sT1}, s{sJ}, 6'); A(f's_add_u32 s{sT0}, s{sT0}, s{sT1}')
    A(f's_add_u32 s{sT0}, s{sT0}, {KM}')
    A(f'v_lshlrev_b32 v{vKo}, 13, v6'); A(f'v_lshl_add_u32 v{vKo}, v4, 4, v{vKo}'); A(f'v_add_u32 v{vKo}, s{sT0}, v{vKo}')
    A(f's_lshl_b32 s{sT0}, s{sH}, 13'); A(f's_lshl_b32 s{sT1}, s{sJ}, 10'); A(f's_add_u32 s{sT1}, s{sT0}, s{sT1}')
    A(f'v_add_u32 v{vPub}, s{sT1}, v7')
    A(f's_lshl_b32 s{sT1}, s{sJ}, 8'); A(f's_add_u32 s{sT1}, s{sT0}, s{sT1}'); A(f's_add_u32 s{sT1}, s{sT1}, 4096')
    A('v_and_b32 v16, 1, v4'); A(f'v_lshlrev_b32 v{vPub2}, 5, v6'); A(f'v_lshl_add_u32 v{vPub2}, v16, 4, v{vPub2}'); A(f'v_add_u32 v{vPub2}, s{sT1}, v{vPub2}')
    A(f's_mov_b32 s{sMhi}, 0xff00ff00'); A(f's_mov_b32 s{sMhi+1}, 0xff00ff00')
    A(f's_mov_b32 s{sMm}, 0'); A(f's_mov_b32 s{sMm+1}, 0x00ff00ff')
    A(f's_branch {le}')
    A.label(l6)
    A(f's_mov_b32 s{sEv}, 0x0000ffff'); A(f's_mov_b32 s{sEv+1}, 0x0000ffff'); A(f's_mov_b32 s{sOd}, 0xffff0000'); A(f's_mov_b32 s{sOd+1}, 0xffff0000')
    A(f's_lshl_b32 s{sT0}, s{sH}, 13'); A(f'v_add_u32 v{vAp0}, s{sT0}, v7')
    A('v_and_b32 v16, 1, v4'); A('v_lshlrev_b32 v16, 2, v16'); A('v_and_b32 v17, 2, v4'); A('v_add3_u32 v16, v16, v17, v5')
    A(f'v_lshlrev_b32 v16, 2, v16'); A(f'v_lshl_add_u32 v16, v6, 5, v16')
    A(f's_add_u32 s{sT0}, s{sT0}, 4096'); A(f'v_add_u32 v{vAp1}, s{sT0}, v16')
    A(f'v_lshrrev_b32 v16, 1, v4'); A(f'v_lshlrev_b32 v16, 4, v16'); A(f'v_lshl_add_u32 v{vVr}, v3, 5, v16'); A(f'v_add_u32 v{vVr}, {L_VP}, v{vVr}')
    A(f'v_add_u32 v16, v16, v3'); A(f'v_lshlrev_b32 v16, 4, v16'); A(f'v_add_u32 v{vVxr}, {L_PF+2048}, v16')
    A(f'v_lshrrev_b32 v16, 3, v3'); A('v_lshl_add_u32 v16, v16, 4, v18'); A('v_and_b32 v17, 1, v3'); A('v_lshl_add_u32 v16, v17, 3, v16')
    A('v_bfe_u32 v17, v3, 1, 2'); A('v_lshl_add_u32 v16, v16, 2, v17'); A('v_lshlrev_b32 v16, 2, v16')
    A(f's_lshl_b32 s{sT0}, s{sX}, 14'); A(f's_lshl_b32 s{sT1}, s{sC}, 9'); A(f's_add_u32 s{sT0}, s{sT0}, s{sT1}'); A(f'v_add_u32 v{vOp}, s{sT0}, v16')
    A(f'v_or_b32 v16, 0x48, v5'); A(f'v_lshlrev_b32 v16, 8, v16'); A(f'v_and_b32 v17, 0xff, v{vIdx}'); A(f'v_or_b32 v{vIdp}, v16, v17')
    for i in range(16): A(f'v_mov_b32 v{vB+i}, 0')
    for i in range(8): A(f'v_mov_b32 v{vOne+i}, 0x3f803f80')
    A(f'v_mov_b32 v{vP+3}, 0')
    A.label(le)
    A('s_waitcnt vmcnt(0)')
    A(f'v_min_u32 v{vU}, s{sSent}, v{vU}'); A(f'v_min_u32 v{vU+1}, s{sSent}, v{vU+1}')
    n5 = A.uid('n5')
    A(f's_cmp_lg_u32 s{sW}, 5'); A(f's_cbranch_scc1 {n5}')
    A(f'buffer_store_dwordx2 v[{vU}:{vU+1}], v{vDp}, {WS}, s{sD} offen')
    A.label(n5)
    A('s_barrier')
    A.label('L_vo_loop')
    A(f's_cmp_eq_u32 s{sW}, 4'); A('s_cbranch_scc1 L_w4')
    A(f's_cmp_eq_u32 s{sW}, 6'); A('s_cbranch_scc1 L_w6')
    A(f's_xor_b32 s{sT0}, s{sCc}, 16384')
    A(f's_cmp_eq_u32 s{sW}, 5')
    A('s_barrier')
    n7 = A.uid('n7')
    A(f's_cbranch_scc1 {n7}')
    for i in range(1, 4):
        A(f'buffer_store_dwordx4 v[{vOn2}:{vOn2+3}], v{vCi}, {WS}, s{sT0} offen offset:{1024*i} sc1')
    A(f'buffer_store_dwordx2 v[{vOn2}:{vOn2+1}], v{vRb}, {WS}, s{sBo} offen')
    A.label(n7)
    astamp('a1', 5)
    A('s_barrier')
    last_check('L_rec_done')
    A.label('L_vo_z')
    for i in range(4): A(f'v_mov_b32 v{vAC+i}, 0')
    A('s_barrier')
    A.label('L_vo_b')
    stamp('Bpub')
    vdelay(dB)
    gather(sB, 1, vAC, 'B', gap)
    A('s_nop 7')
    A(f'ds_write2st64_b32 v{vRw}, v{vAC}, v{vAC+1} offset0:0 offset1:1')
    A(f'ds_write2st64_b32 v{vRw}, v{vAC+2}, v{vAC+3} offset0:2 offset1:3')
    A('s_waitcnt lgkmcnt(0)')
    stamp('pre4')
    A(f's_cmp_lg_u32 s{sW}, 5')
    A('s_barrier')
    A('s_cbranch_scc1 L_vo_n5')
    stamp('b4')
    for w in range(4): A(f'ds_read_b128 v[{vU+4*w}:{vU+4*w+3}], v7 offset:{L_RED + 1024*w}')
    def add4(d, x, y):
        A(f'v_pk_add_f32 v[{d}:{d+1}], v[{x}:{x+1}], v[{y}:{y+1}]'); A(f'v_pk_add_f32 v[{d+2}:{d+3}], v[{x+2}:{x+3}], v[{y+2}:{y+3}]')
    A('s_waitcnt lgkmcnt(2)'); add4(vU, vU, vU + 4)
    A('s_waitcnt lgkmcnt(1)'); add4(vU, vU, vU + 8)
    A('s_waitcnt lgkmcnt(0)'); add4(vU, vU, vU + 12)
    for i in range(1, 4):
        A(f'buffer_store_dwordx4 v[{vU}:{vU+3}], v{vCp+i-1}, {WS}, s{sCc} offen offset:{1024*i} sc1')
    stamp('Cpub')
    CS = (vU + 4, vU + 16)
    vE = 104
    def c_loads(k):
        for i in range(1, 4):
            b = CS[k] + 4 * (i - 1)
            A(f'buffer_load_dwordx4 v[{b}:{b+3}], v{vCi}, {WS}, s{sCc} offen offset:{1024*i} sc1')
    def c_try(k):
        b = CS[k]
        A.label(f'L_c_wait{k}')
        A('s_waitcnt vmcnt(5)')
        stamp('Carr')
        add4(vE, vU, b)
        A('s_waitcnt vmcnt(3)')
        add4(vE + 4, b + 4, b + 8)
        add4(vE, vE, vE + 4)
        A(f'v_maximum3_f32 v{vE+8}, v{vE}, v{vE+1}, v{vE+2}')
        A(f'v_cmp_u_f32 vcc, v{vE+8}, v{vE+3}')
        A(f'v_cvt_pk_bf16_f32 v{vE}, v{vE}, v{vE+1}'); A(f'v_cvt_pk_bf16_f32 v{vE+1}, v{vE+2}, v{vE+3}')
        A(f'v_min_u32 v{vE}, s{sSent}, v{vE}'); A(f'v_min_u32 v{vE+1}, s{sSent}, v{vE+1}')
        A(f's_cbranch_vccnz L_c_fail{k}')
    delay(dC)
    c_loads(0)
    delay(dC2)
    c_loads(1)
    c_try(0)
    A.label('L_c_ok')
    A(f'buffer_store_dwordx2 v[{vE}:{vE+1}], v{vDp}, {WS}, s{sDo} offen')
    A.label('L_vo_b5')
    A('s_barrier')
    stamp('Dpub')
    astamp('a5', 7)
    advance()
    A('s_waitcnt vmcnt(0)')
    A('s_branch L_vo_loop')
    A.label('L_vo_n5')
    A(f's_cmp_lg_u32 s{sW}, 4'); A('s_cbranch_scc1 L_vo_b5')
    delay(dP)
    A(f's_mov_b64 exec, s[{sMhi}:{sMhi+1}]')
    A(f'buffer_store_dwordx4 v[{vR}:{vR+3}], v{vKo}, {WS}, s{sSave} offen')
    A('s_mov_b64 exec, -1')
    A('s_branch L_vo_b5')
    for k in range(2):
        b = CS[k]
        A.label(f'L_c_fail{k}')
        A(f's_sub_u32 s{sBud}, s{sBud}, 1'); A(f's_cbranch_scc1 {exit_label}')
        A(f's_sub_u32 s{sFc}, s{sFc}, 1')
        A(f'v_max3_u32 v{vE+8}, v{b}, v{b+1}, v{b+2}')
        for q in range(3, 11, 2): A(f'v_max3_u32 v{vE+8}, v{vE+8}, v{b+q}, v{b+q+1}')
        A(f'v_max_u32 v{vE+8}, v{vE+8}, v{b+11}')
        A(f'v_cmp_eq_u32 vcc, -1, v{vE+8}'); A('s_cbranch_vccz L_c_ok')
        c_loads(k)
        if k == 0:
            c_try(1); A('s_branch L_c_ok')
        else:
            A('s_branch L_c_wait0')
    emit_tails()
    A.label('L_w4')
    A(f'ds_read_b128 v[{vKX}:{vKX+3}], v7 offset:{L_PF}'); A(f'ds_read_b128 v[{vKX+4}:{vKX+7}], v7 offset:{L_PF+1024}')
    A('s_waitcnt lgkmcnt(0)')
    A('s_barrier')
    for w in range(4):
        for hf in range(2):
            A(f'ds_read_b128 v[{vF+8*w+4*hf}:{vF+8*w+4*hf+3}], v{vRr0} offset:{w*QP_PART + hf*16}')
    A('s_waitcnt lgkmcnt(4)')
    for q in range(4): A(f'v_pk_add_f32 v[{vF+2*q}:{vF+2*q+1}], v[{vF+2*q}:{vF+2*q+1}], v[{vF+8+2*q}:{vF+8+2*q+1}]')
    A('s_waitcnt lgkmcnt(2)')
    for q in range(4): A(f'v_pk_add_f32 v[{vF+2*q}:{vF+2*q+1}], v[{vF+2*q}:{vF+2*q+1}], v[{vF+16+2*q}:{vF+16+2*q+1}]')
    A('s_waitcnt lgkmcnt(0)')
    for q in range(4): A(f'v_pk_add_f32 v[{vF+2*q}:{vF+2*q+1}], v[{vF+2*q}:{vF+2*q+1}], v[{vF+24+2*q}:{vF+24+2*q+1}]')
    for q in range(4): A(f'v_cvt_pk_bf16_f32 v{vR+q}, v{vF+2*q}, v{vF+2*q+1}')
    A('s_nop 1')
    A(f'v_mfma_f32_16x16x32_bf16 v[{vS+8}:{vS+11}], v[{vR}:{vR+3}], v[{vR}:{vR+3}], 0')
    A(f'v_mfma_f32_16x16x32_bf16 v[{vS+4}:{vS+7}], v[{vKX+4}:{vKX+7}], v[{vR}:{vR+3}], 0')
    A(f'v_mfma_f32_16x16x32_bf16 v[{vS}:{vS+3}], v[{vKX}:{vKX+3}], v[{vR}:{vR+3}], 0')
    A('s_nop 4')
    A(f's_mov_b64 exec, s[{sMm}:{sMm+1}]')
    A(f'buffer_store_dwordx4 v[{vS+8}:{vS+11}], v{vPub2}, {WS}, s{sA} offen')
    A('s_mov_b64 exec, -1')
    for i in range(4): A(f'v_mov_b32_dpp v{vS+i}, v{vS+4+i} row_ror:8 row_mask:0xf bank_mask:0xc')
    A(f'buffer_store_dwordx4 v[{vS}:{vS+3}], v{vPub}, {WS}, s{sA} offen')
    stamp('Apub')
    A('s_barrier')
    A(f's_cmp_lg_u32 s{sStep}, {nsteps-1}'); A('s_cbranch_scc1 L_vo_z')
    A(f's_mov_b64 exec, s[{sMhi}:{sMhi+1}]')
    A(f'buffer_store_dwordx4 v[{vR}:{vR+3}], v{vKo}, {WS}, s{sSave} offen')
    A('s_mov_b64 exec, -1')
    A('s_branch L_rec_done')
    A.label('L_w6')
    A(f's_mov_b64 exec, s[{sEv}:{sEv+1}]')
    for q in range(4): A(f'ds_read_b128 v[{vB+4*q}:{vB+4*q+3}], v{vVxr} offset:{512*q}')
    A('s_mov_b64 exec, -1')
    vO = 84
    for i in range(12): A(f'v_mov_b32 v{vO+i}, 0')
    for i in range(4): A(f'v_mov_b32 v{vAC+i}, 0')
    A('s_waitcnt lgkmcnt(0)')
    A('s_barrier')
    A('s_barrier')
    stamp('b3')
    last_check('L_rec_done')
    delay(dA)
    SETS = ((vM, 48), (64, 80))
    def a_loads(k):
        bx, bm = SETS[k]
        for i in range(4):
            A(f'buffer_load_dword v{bm+i}, v{vAp1}, {WS}, s{sA} offen offset:{256*i} sc1')
        for i in range(4):
            A(f'buffer_load_dwordx4 v[{bx+4*i}:{bx+4*i+3}], v{vAp0}, {WS}, s{sA} offen offset:{1024*i} sc1')
    a_loads(0)
    vV = vF + 4
    for t in range(2):
        for u in range(4):
            A(f'ds_read_b128 v[{vV+16*t+4*u}:{vV+16*t+4*u+3}], v{vVr} offset:{u*1024 + t*512}')
    A('s_waitcnt lgkmcnt(0)')
    for t in range(2):
        b = vV + 16 * t
        for q in range(2):
            A(f'v_pk_add_f32 v[{b+2*q}:{b+2*q+1}], v[{b+2*q}:{b+2*q+1}], v[{b+4+2*q}:{b+4+2*q+1}]')
            A(f'v_pk_add_f32 v[{b+8+2*q}:{b+8+2*q+1}], v[{b+8+2*q}:{b+8+2*q+1}], v[{b+12+2*q}:{b+12+2*q+1}]')
        for q in range(2):
            A(f'v_pk_add_f32 v[{b+2*q}:{b+2*q+1}], v[{b+2*q}:{b+2*q+1}], v[{b+8+2*q}:{b+8+2*q+1}]')
    A(f's_mov_b64 exec, s[{sOd}:{sOd+1}]')
    for t in range(2):
        for q in range(2):
            A(f'v_cvt_pk_bf16_f32 v{vB+8*t+4*q}, v{vV+16*t+2*q}, v{vV+16*t+2*q+1}')
    A('s_mov_b64 exec, -1')
    a_loads(1)
    e = 56
    sv = [e, e + 1, e + 2, e + 3, e + 4]
    r, t = vT, vT + 1
    def a_try(k):
        bx, bm = SETS[k]
        A.label(f'L_a_wait{k}')
        A('s_waitcnt vmcnt(10)')
        stamp('Aarr')
        A(f'v_pk_add_f32 v[{e+4}:{e+5}], v[{bm}:{bm+1}], v[{bm+2}:{bm+3}]')
        A(f'v_pk_add_f32 v[{e}:{e+1}], v[{bx}:{bx+1}], v[{bx+4}:{bx+5}]')
        A(f'v_pk_add_f32 v[{e+2}:{e+3}], v[{bx+2}:{bx+3}], v[{bx+6}:{bx+7}]')
        A(f'v_add_f32 v{e+4}, v{e+4}, v{e+5}')
        A('s_waitcnt vmcnt(9)')
        A(f'v_pk_add_f32 v[{e}:{e+1}], v[{e}:{e+1}], v[{bx+8}:{bx+9}]')
        A(f'v_pk_add_f32 v[{e+2}:{e+3}], v[{e+2}:{e+3}], v[{bx+10}:{bx+11}]')
        A('s_waitcnt vmcnt(8)')
        A(f'v_pk_add_f32 v[{e}:{e+1}], v[{e}:{e+1}], v[{bx+12}:{bx+13}]')
        A(f'v_pk_add_f32 v[{e+2}:{e+3}], v[{e+2}:{e+3}], v[{bx+14}:{bx+15}]')
        A(f'v_maximum3_f32 v{vT}, v{sv[0]}, v{sv[1]}, v{sv[4]}'); A(f'v_maximum3_f32 v{vT}, v{vT}, v{sv[2]}, v{sv[3]}')
        A(f'v_cmp_u_f32 vcc, v{vT}, v{vT}')
        A('s_nop 0')
        A(f'v_max_f32_dpp v{r}, v{r}, v{r} row_ror:8 row_mask:0xf bank_mask:0xf')
        A(f'v_mov_b32 v{t}, v{r}'); A('s_nop 1')
        A(f'v_permlane16_swap_b32 v{r}, v{t}')
        A(f's_cbranch_vccnz L_a_fail{k}')
    a_try(0)
    A.label('L_a_ok')
    A(f'v_max_f32 v{r}, v{r}, v{t}')
    A(f'v_mov_b32 v{t}, v{r}'); A('s_nop 1')
    A(f'v_permlane32_swap_b32 v{r}, v{t}'); A(f'v_max_f32 v{r}, v{r}, v{t}')
    A(f'v_mul_f32 v{vT}, s{sScale}, v{vT}')
    for x in sv: A(f'v_fma_f32 v{x}, v{x}, s{sScale}, -v{vT}')
    for x in sv: A(f'v_exp_f32 v{x}, v{x}')
    A(f'v_cvt_pk_bf16_f32 v{vP}, v{sv[0]}, v{sv[1]}'); A(f'v_cvt_pk_bf16_f32 v{vP+1}, v{sv[2]}, v{sv[3]}')
    A(f'v_cvt_pk_bf16_f32 v{vP+2}, v{sv[4]}, 0')
    A('s_nop 1')
    A(f'v_smfmac_f32_16x16x64_bf16 v[{vO}:{vO+3}], v[{vP}:{vP+3}], v[{vOne}:{vOne+7}], v{vIdp}')
    for t in range(2): A(f'v_smfmac_f32_16x16x64_bf16 v[{vO+4+4*t}:{vO+7+4*t}], v[{vP}:{vP+3}], v[{vB+8*t}:{vB+8*t+7}], v{vIdp}')
    A('s_nop 5')
    for t in range(3):
        b = vO + 4 * t
        A(f'v_permlane32_swap_b32 v{b}, v{b+1}'); A(f'v_permlane32_swap_b32 v{b+2}, v{b+3}')
        A(f'v_add_f32 v{b}, v{b}, v{b+1}'); A(f'v_add_f32 v{b+2}, v{b+2}, v{b+3}')
        if t == 0:
            A(f'v_rcp_f32 v{b}, v{b}'); A(f'v_rcp_f32 v{b+2}, v{b+2}')
        else:
            A(f'v_mul_f32 v{b}, v{b}, v{vO}'); A(f'v_mul_f32 v{b+2}, v{b+2}, v{vO+2}')
    A(f'v_cvt_pk_bf16_f32 v{vT+2}, v{vO+4}, v{vO+8}'); A(f'v_cvt_pk_bf16_f32 v{vT+3}, v{vO+6}, v{vO+10}')
    A(f'v_min_u32 v{vT+2}, s{sSent}, v{vT+2}')
    A(f'buffer_store_dword v{vT+2}, v{vOp}, {WS}, s{sB} offen')
    A(f'v_min_u32 v{vT+3}, s{sSent}, v{vT+3}')
    A(f'buffer_store_dword v{vT+3}, v{vOp}, {WS}, s{sB} offen offset:32')
    A('s_barrier')
    A('s_branch L_vo_b')
    for k in range(2):
        bx, bm = SETS[k]
        A.label(f'L_a_fail{k}')
        A(f's_sub_u32 s{sBud}, s{sBud}, 1'); A(f's_cbranch_scc1 {exit_label}')
        A(f's_and_b32 s{sT0}, s{sBud}, 7'); A(f's_cbranch_scc1 L_a_re{k}')
        regs = list(range(bx, bx + 16)) + list(range(bm, bm + 4))
        A(f'v_max3_u32 v{vT+2}, v{regs[0]}, v{regs[1]}, v{regs[2]}')
        for q in range(3, 19, 2): A(f'v_max3_u32 v{vT+2}, v{vT+2}, v{regs[q]}, v{regs[q+1]}')
        A(f'v_max_u32 v{vT+2}, v{vT+2}, v{regs[19]}')
        A(f'v_cmp_eq_u32 vcc, -1, v{vT+2}'); A('s_cbranch_vccz L_a_ok')
        A.label(f'L_a_re{k}')
        a_loads(k)
        if k == 0:
            a_try(1)
            A('s_branch L_a_ok')
        else:
            A('s_branch L_a_wait0')

    A.label('L_rec_done')
    if prof is not None:
        A(f's_memtime s[{sP}:{sP+1}]'); A('s_waitcnt lgkmcnt(0)')
        A(f's_lshl_b32 s{sT0}, s{sX}, 5'); A(f's_add_u32 s{sT0}, s{sT0}, s{sC}'); A(f's_lshl_b32 s{sT0}, s{sT0}, 3'); A(f's_add_u32 s{sT0}, s{sT0}, s{sW}')
        A(f's_lshl_b32 s{sT0}, s{sT0}, 7'); A(f's_add_u32 s{sT0}, s{sT0}, {PROF}')
        A('v_mov_b32 v1, 0'); A('s_mov_b64 exec, 1')
        for i in range(len(stamps)):
            A(f'v_mov_b32 v2, s{sPF+2*i}'); A(f'buffer_store_dword v2, v1, {WS}, s{sT0} offen offset:{4*i}')
        A(f'v_mov_b32 v2, s{sP}'); A(f'buffer_store_dword v2, v1, {WS}, s{sT0} offen offset:120')
        A(f'v_mov_b32 v2, s{sBud}'); A(f'buffer_store_dword v2, v1, {WS}, s{sT0} offen offset:124')
        A(f'v_mov_b32 v2, s58'); A(f'buffer_store_dword v2, v1, {WS}, s{sT0} offen offset:116')
        A('s_mov_b64 exec, -1')
    return stamps

import struct
def float_hex(f):
    return '0x%08x' % struct.unpack('<I', struct.pack('<f', f))[0]

def gen_ticket(A):
    A(f's_load_dwordx2 s[4:5], s[0:1], {KA["ws"]}')
    A(f's_load_dwordx2 s[6:7], s[0:1], {KA["dbg"]}')
    A(f's_getreg_b32 s{sX}, hwreg(HW_REG_XCC_ID)')
    A(f's_and_b32 s{sX}, s{sX}, 7')
    A('s_waitcnt lgkmcnt(0)')
    srd(A, S_WS, 4, WS_BYTES); srd(A, S_DBG, 6, 256)
    A('v_cmp_eq_u32 vcc, 0, v0')
    A('s_and_saveexec_b64 s[38:39], vcc')
    A('s_cbranch_execz L_noticket')
    A(f's_lshl_b32 s3, s{sX}, 2')
    A('v_mov_b32 v1, s3'); A('v_mov_b32 v2, 1')
    A(f'buffer_atomic_add v2, v1, s[{S_DBG}:{S_DBG+3}], 0 offen sc0 sc1')
    A('s_waitcnt vmcnt(0)')
    A(f'v_mov_b32 v1, {L_TICKET}')
    A('ds_write_b32 v1, v2')
    A('s_waitcnt lgkmcnt(0)')
    A.label('L_noticket')
    A('s_mov_b64 exec, s[38:39]')
    A('s_barrier')
    A(f'v_mov_b32 v1, {L_TICKET}')
    A('ds_read_b32 v2, v1')
    A('s_waitcnt lgkmcnt(0)')
    A(f'v_readfirstlane_b32 s{sC}, v2')
    A('s_nop 3')

def gen_standalone(**kw):
    A = Asm()
    A.raw(f'; @launch grid=(256,1,1) block=(512,1,1) lds={REC_LDS}')
    A.raw('.amdgcn_target "amdgcn-amd-amdhsa--gfx950"')
    kernel_begin(A, 'rec_kernel')
    gen_ticket(A)
    A(f's_cmp_ge_u32 s{sX}, 4'); A('s_cbranch_scc1 L_end')
    A(f's_cmp_ge_u32 s{sC}, 32'); A('s_cbranch_scc1 L_end')
    stamps = gen_rec(A, **kw)
    A.label('L_end')
    A('s_endpgm')
    kernel_desc(A, 'rec_kernel', vgpr=256, sgpr=100, accum=256)
    return A.text(), stamps
if __name__ == '__main__':
    t, s = gen_standalone(prof=20)
    open('rec.s', 'w').write(t); print(s)
```

```python
import sys
from asmlib import *
from layout import *
import rec_gen
from gemm_gen import *
from attn_gen import *
NAME = 'concat_heads__linear_attn_block__memory_aug_recurrent_mem_tr__prompt'
GL = 131072 + 256

def load_ptrs(A, names, base=48):
    for i, n in enumerate(names): A(f's_load_dwordx2 s[{base+2*i}:{base+2*i+1}], s[0:1], {KA[n]}')
def ws_srd(A):
    A(f's_load_dwordx2 s[4:5], s[0:1], {KA["ws"]}')

PT = 82
def k_proj(A):
    kernel_begin(A, 'proj_kernel')
    A('s_cmp_ge_u32 s2, 256'); A('s_cbranch_scc1 P_end')
    ws_srd(A); load_ptrs(A, ['B_x', 'B_Wq', 'B_Wk', 'B_Wv', 'A_x', 'A_wqkv'], PT)
    G = Gemm(A); G.common()
    A('s_waitcnt lgkmcnt(0)')
    srd(A, 8, 4, WS_BYTES)
    sCB = 43
    A('s_lshr_b32 s3, s2, 3'); A(f's_and_b32 s{sRow}, s3, 7'); A(f's_lshl_b32 s{sRow}, s{sRow}, 8')
    A('s_lshr_b32 s3, s3, 3'); A(f's_and_b32 s{sCB}, s2, 7'); A(f's_lshl_b32 s{sCB}, s{sCB}, 2'); A(f's_add_u32 s{sCB}, s{sCB}, s3')
    def btask(kind, wptr):
        srd(A, gA, PT, 2048 * 2048); srd(A, gB, wptr, 8 * MB)
        G.setup(2048, 8192, kind != 'V')
        A(f's_and_b32 s{sCol}, s{sCB}, 15'); A(f's_lshl_b32 s{sCol}, s{sCol}, 8')
        A(f's_lshl_b32 s{sAo}, s{sRow}, 11'); A(f's_lshl_b32 s{sBo_}, s{sCol}, 1')
        G.mainloop(16)
        epi_frag(G, kind)
    A(f's_cmp_ge_u32 s{sCB}, 16'); A('s_cbranch_scc1 P_v')
    btask('K', PT + 4)
    A('s_barrier')
    btask('Q', PT + 2)
    A('s_branch P_end')
    A.label('P_v')
    btask('V', PT + 6)
    A(f's_cmp_ge_u32 s{sCB}, 24'); A('s_cbranch_scc1 P_end')
    A('s_barrier')
    srd(A, gA, PT + 8, 2048 * 2048); srd(A, gB, PT + 10, 1024 * 6144)
    G.setup(2048, 6144, False, colmap=akv_colmap)
    A(f's_and_b32 s{sCol}, s{sCB}, 7'); A(f's_lshl_b32 s{sCol}, s{sCol}, 2')
    A(f's_lshl_b32 s{sAo}, s{sRow}, 11'); A(f's_lshl_b32 s{sBo_}, s{sCol}, 6')
    G.mainloop(16)
    epi_akv(G)
    A.label('P_end'); A('s_endpgm')

def k_rec(A, **kw):
    kernel_begin(A, 'rec_kernel')
    rec_gen.gen_ticket(A)
    A(f's_cmp_ge_u32 s{rec_gen.sX}, 4'); A('s_cbranch_scc1 R_other')
    A(f's_cmp_ge_u32 s{rec_gen.sC}, 32'); A('s_cbranch_scc1 L_end')
    rec_gen.gen_rec(A, **kw)
    A('s_branch L_end')
    A.label('R_other')
    A(f's_cmp_ge_u32 s{rec_gen.sC}, 2'); A('s_cbranch_scc1 L_end')
    Gemm(A).common()
    A(f's_sub_u32 s43, s{rec_gen.sX}, 4'); A('s_lshl_b32 s43, s43, 1'); A(f's_add_u32 s43, s43, s{rec_gen.sC}'); A('s_lshl_b32 s43, s43, 3'); A(f's_add_u32 s43, s43, s{sW_}')
    kv_reduce(A, 43)
    A.label('L_end'); A('s_endpgm')

def k_aq(A):
    kernel_begin(A, 'aq_kernel')
    A('s_cmp_ge_u32 s2, 32'); A('s_cbranch_scc1 Q_end')
    ws_srd(A); load_ptrs(A, ['A_x', 'A_wqkv'], PT)
    G = Gemm(A); G.common()
    A('s_waitcnt lgkmcnt(0)')
    srd(A, 8, 4, WS_BYTES); srd(A, gA, PT, 2048 * 2048); srd(A, gB, PT + 2, 1024 * 6144)
    G.setup(2048, 6144, True, perm=False)
    A(f's_and_b32 s{sRow}, s2, 7'); A(f's_lshl_b32 s{sRow}, s{sRow}, 8'); A(f's_lshr_b32 s{sCol}, s2, 3'); A(f's_lshl_b32 s{sCol}, s{sCol}, 8')
    A(f's_lshl_b32 s{sAo}, s{sRow}, 11'); A(f's_lshl_b32 s{sBo_}, s{sCol}, 1')
    G.mainloop(16)
    epi_aq(G)
    A.label('Q_end'); A('s_endpgm')

def k_attn(A):
    kernel_begin(A, 'attn_kernel')
    A('s_cmp_ge_u32 s2, 256'); A('s_cbranch_scc1 T_end')
    ws_srd(A)
    Gemm(A).common()
    A('s_waitcnt lgkmcnt(0)')
    srd(A, 8, 4, WS_BYTES)
    attn_setup(A)
    A('s_lshr_b32 s43, s2, 2'); A('s_and_b32 s44, s2, 3'); A('s_lshl_b32 s44, s44, 3'); A(f's_add_u32 s44, s44, s{sW_}')
    attn_unit(A, 43, 44)
    A.label('T_end'); A('s_endpgm')

def k_out(A):
    kernel_begin(A, 'out_kernel')
    A('s_cmp_ge_u32 s2, 256'); A('s_cbranch_scc1 O_end')
    ws_srd(A); load_ptrs(A, ['B_Wo', 'A_wo', 'out'], PT)
    G = Gemm(A, MI=2, NI=1); G.common()
    A('s_waitcnt lgkmcnt(0)')
    srd(A, 8, 4, WS_BYTES); srd(A, gA, 4, WS_BYTES); srd(A, gC, PT + 4, 2048 * 4096)
    A(f's_and_b32 s{sCol}, s2, 7'); A(f's_lshl_b32 s{sCol}, s{sCol}, 7'); A(f's_bfe_u32 s{sRow}, s2, 0x40003'); A(f's_lshl_b32 s{sRow}, s{sRow}, 7')
    A(f's_lshl_b32 s{sBo_}, s{sCol}, 1')
    A('s_cmp_ge_u32 s2, 128'); A('s_cbranch_scc1 O_a')
    srd(A, gB, PT, 8 * MB)
    G.setup(8192, 2048, True, rowmap=True)
    A(f's_lshl_b32 s{sAo}, s{sRow}, 13'); A(f's_add_u32 s{sAo}, s{sAo}, {OB}')
    G.mainloop(64)
    epi_rows(G, f's[{gC}:{gC+3}]', 4096, 2048)
    A('s_branch O_end')
    A.label('O_a')
    srd(A, gB, PT + 2, 2 * MB)
    G.setup(2048, 2048, True)
    A(f's_lshl_b32 s{sAo}, s{sRow}, 11'); A(f's_add_u32 s{sAo}, s{sAo}, {OA}')
    G.mainloop(16)
    epi_rows(G, f's[{gC}:{gC+3}]', 4096, 0)
    A.label('O_end'); A('s_endpgm')

def build_text(**kw):
    A = Asm()
    ks = [('proj_kernel', 256, GL), ('rec_kernel', 256, GL), ('aq_kernel', 32, GL), ('attn_kernel', 256, 0), ('out_kernel', 256, GL)]
    for n, g, l in ks: A.raw(f'; @launch kernel={n} grid=({g},1,1) block=(512,1,1) lds={l}')
    A.raw('.amdgcn_target "amdgcn-amd-amdhsa--gfx950"')
    k_proj(A); k_rec(A, **kw); k_aq(A); k_attn(A); k_out(A)
    for n, g, l in ks: kernel_desc(A, n, vgpr=256, sgpr=100, accum=256)
    return A.text()
if __name__ == '__main__':
    open(f'cdna_kernels/{NAME}.s', 'w').write(build_text())
```

```python
from asmlib import *
from layout import *
from gemm_gen import fhex, LOG2E, WSR, vLane, sT0, sT1, sT2
sMk = 68
sSc, sNeg, sNinf = 78, 79, 80
def attn_setup(A):
    L = vLane
    A(f'v_and_b32 v3, 15, v{L}'); A(f'v_lshrrev_b32 v4, 4, v{L}')
    for tb in range(4):
        A(f'v_lshlrev_b32 v5, 2, v4'); A(f'v_add_u32 v5, {tb}, v5'); A(f'v_cmp_le_u32 s[{sMk+2*tb}:{sMk+2*tb+1}], v5, v3')
    A(f'v_cmp_gt_u32 s[{sMk+8}:{sMk+9}], 2, v4')
    A(f's_mov_b32 s{sSc}, {fhex(128 ** -0.5 * LOG2E)}')
    A(f'v_mov_b32 v8, {fhex(-1e9 * LOG2E)}'); A('v_mov_b32 v9, 0xff800000')
    A(f'v_lshlrev_b32 v10, 4, v{L}')
    A('v_and_b32 v5, 7, v3'); A('v_lshl_add_u32 v11, v4, 3, v5'); A('v_lshlrev_b32 v11, 4, v11')
    A('v_and_b32 v5, 1, v4'); A('v_lshlrev_b32 v12, 4, v3'); A('v_lshl_add_u32 v12, v5, 3, v12')
    A('v_lshlrev_b32 v13, 13, v3'); A('v_lshl_add_u32 v13, v4, 4, v13')
def attn_unit(A, sSeg, sHead, ldflag='', stflag=''):
    vQ, vK, vV, vKM, vVM = 32, 64, 96, 128, 144
    vS, vP, vO = 160, 184, 196
    A(f's_lshl_b32 s{sT0}, s{sHead}, 8'); A(f's_add_u32 s{sT0}, s{sT0}, s{sSeg}')
    A(f's_lshl_b32 s{sT1}, s{sT0}, 12'); A(f's_add_u32 s{sT1}, s{sT1}, {KVF}')
    A(f's_lshl_b32 s{sT0}, s{sT0}, 11'); A(f's_add_u32 s{sT0}, s{sT0}, {QX}')
    A(f's_lshl_b32 s{sT2}, s{sSeg}, 16'); A(f's_lshl_b32 s3, s{sHead}, 11'); A(f's_add_u32 s{sT2}, s{sT2}, s3'); A(f's_add_u32 s{sT2}, s{sT2}, {KM}')
    for j in range(4):
        for t in range(2): A(f'buffer_load_dwordx4 v[{vQ+8*j+4*t}:{vQ+8*j+4*t+3}], v10, {WSR}, s{sT0} offen offset:{1024*t} {ldflag}')
        for t in range(2): A(f'buffer_load_dwordx4 v[{vK+8*j+4*t}:{vK+8*j+4*t+3}], v10, {WSR}, s{sT1} offen offset:{1024*t} {ldflag}')
        A(f'buffer_load_dwordx4 v[{vKM+4*j}:{vKM+4*j+3}], v11, {WSR}, s{sT2} offen offset:{512*j} {ldflag}')
        A(f's_add_u32 s{sT0}, s{sT0}, {64*2048}'); A(f's_add_u32 s{sT1}, s{sT1}, {64*4096}')
    A(f's_sub_u32 s{sT1}, s{sT1}, {4*64*4096}')
    A(f's_lshl_b32 s{sT2}, s{sSeg}, 16'); A(f's_lshl_b32 s3, s{sHead}, 11'); A(f's_add_u32 s{sT2}, s{sT2}, s3'); A(f's_add_u32 s{sT2}, s{sT2}, {VMF}')
    for j in range(4):
        for t in range(2): A(f'buffer_load_dwordx4 v[{vV+8*j+4*t}:{vV+8*j+4*t+3}], v10, {WSR}, s{sT1} offen offset:{2048+1024*t} {ldflag}')
        for t in range(2): A(f'buffer_load_dwordx2 v[{vVM+4*j+2*t}:{vVM+4*j+2*t+1}], v12, {WSR}, s{sT2} offen offset:{512*j+256*t} {ldflag}')
        A(f's_add_u32 s{sT1}, s{sT1}, {64*4096}')
    A(f's_lshl_b32 s{sT0}, s{sSeg}, 18'); A(f's_lshl_b32 s3, s{sHead}, 12'); A(f's_add_u32 s{sT0}, s{sT0}, s3'); A(f's_add_u32 s{sT0}, s{sT0}, {OB}')
    for j in range(4):
        A(f's_waitcnt vmcnt({16 + 5*(3-j)})')
        for tt in range(2):
            for kt in range(3):
                a = vK + 8*j + 4*kt if kt < 2 else vKM + 4*j
                d = vS + 12*tt + 4*kt
                if kt == 1 and tt == 0: continue
                A(f'v_mfma_f32_16x16x32_bf16 v[{d}:{d+3}], v[{a}:{a+3}], v[{vQ+8*j+4*tt}:{vQ+8*j+4*tt+3}], ' + ('0' if j == 0 else f'v[{d}:{d+3}]'))
    A('s_nop 7')
    for tt in range(2):
        b = vS + 12 * tt
        live = []
        for kt in range(3):
            for r in range(4):
                x = b + 4*kt + r
                if kt == 1 and tt == 0:
                    A(f'v_mov_b32 v{x}, v8')
                else:
                    A(f'v_mul_f32 v{x}, s{sSc}, v{x}')
                    if kt == 2: A(f'v_cndmask_b32 v{x}, v9, v{x}, s[{sMk+8}:{sMk+9}]')
                    elif kt == tt:
                        tb = r
                        A(f'v_cndmask_b32 v{x}, v8, v{x}, s[{sMk+2*tb}:{sMk+2*tb+1}]')
                live.append(x)
        m, t = 16, 17
        A(f'v_max3_f32 v{m}, v{live[0]}, v{live[1]}, v{live[2]}')
        for q in range(3, 11, 2): A(f'v_max3_f32 v{m}, v{m}, v{live[q]}, v{live[q+1]}')
        A(f'v_max_f32 v{m}, v{m}, v{live[11]}')
        def xr(op):
            for sw in ('v_permlane16_swap_b32', 'v_permlane32_swap_b32'):
                A(f'v_mov_b32 v{t}, v{m}'); A('s_nop 1'); A(f'{sw} v{m}, v{t}'); A(f'{op} v{m}, v{m}, v{t}')
        xr('v_max_f32')
        for x in live: A(f'v_sub_f32 v{x}, v{x}, v{m}')
        for x in live: A(f'v_exp_f32 v{x}, v{x}')
        A(f'v_add_f32 v{m}, v{live[0]}, v{live[1]}')
        for x in live[2:]: A(f'v_add_f32 v{m}, v{m}, v{x}')
        xr('v_add_f32')
        A(f'v_rcp_f32 v{m}, v{m}'); A('s_nop 0')
        for x in live: A(f'v_mul_f32 v{x}, v{x}, v{m}')
        p = vP + 6 * tt
        A(f'v_cvt_pk_bf16_f32 v{p}, v{b}, v{b+1}'); A(f'v_cvt_pk_bf16_f32 v{p+1}, v{b+4}, v{b+5}')
        A(f'v_cvt_pk_bf16_f32 v{p+2}, v{b+2}, v{b+3}'); A(f'v_cvt_pk_bf16_f32 v{p+3}, v{b+6}, v{b+7}')
        A(f'v_cvt_pk_bf16_f32 v{p+4}, v{b+8}, v{b+9}'); A(f'v_cvt_pk_bf16_f32 v{p+5}, v{b+10}, v{b+11}')
    A('s_waitcnt vmcnt(0)')
    A('s_nop 0')
    for tt in range(2):
        p = vP + 6 * tt
        for dt in range(8):
            d = vQ + 32*tt + 4*dt
            A(f'v_mfma_f32_16x16x32_bf16 v[{d}:{d+3}], v[{vV+4*dt}:{vV+4*dt+3}], v[{p}:{p+3}], 0')
        for dt in range(8):
            d = vQ + 32*tt + 4*dt
            A(f'v_mfma_f32_16x16x16_bf16 v[{d}:{d+3}], v[{vVM+2*dt}:{vVM+2*dt+1}], v[{p+4}:{p+5}], v[{d}:{d+3}]')
    A(f's_add_u32 s{sT1}, s{sT0}, {16*8192}')
    for tt in range(2):
        if tt == 1: A('s_nop 3')
        for j in range(4):
            c = vQ + 32*tt + 8*j; d = vS + 4 * (4*tt + j) if 4*tt + j < 6 else vO + 4*(4*tt + j - 6)
            for q in range(4): A(f'v_cvt_pk_bf16_f32 v{d+q}, v{c+2*q}, v{c+2*q+1}')
            A(f'buffer_store_dwordx4 v[{d}:{d+3}], v10, {WSR}, s{sT0 if tt == 0 else sT1} offen offset:{1024*j} {stflag}')
```

```python
from asmlib import *
from layout import *

gA, gB, gC = 12, 16, 64
sW_ = 26
sAo, sBo_, sBs, sCnt, sMA, sMB = 31, 32, 33, 34, 35, 36
sT0, sT1, sT2 = 38, 39, 40
sRow, sCol = 41, 42
sWM, sWN = 44, 45
sRb, sRd, sSB = 27, 28, 29
vLane = 2
vDA, vDB = 8, 12
vRA, vRB = 16, 20
vFR = 64
vACC = 128
BUF = 65536

class Gemm:
    def __init__(self, A, MI=4, NI=2, WM=2, WN=4, fake16=False, NBUF=2, ldflagA='', ldflagB=''):
        self.fake16 = fake16; self.NBUF = NBUF; self.fA = ldflagA; self.fB = ldflagB
        self.A = A; self.MI = MI; self.NI = NI; self.WM = WM; self.WN = WN
        self.BM = WM * MI * 32; self.BN = WN * NI * 32
        self.nA = self.BM // 64
        self.nB = self.BN // 64
        self.rowB = self.BN * 2
        self.offB = self.BM * 128
        self.SB = (self.BM + self.BN) * 128
        assert self.SB * NBUF <= 163840 - 256
    def common(self):
        A = self.A
        A(f'v_lshrrev_b32 v1, 6, v0'); A(f'v_and_b32 v{vLane}, 63, v0')
        A(f'v_readfirstlane_b32 s{sW_}, v1')
        A('s_nop 3')
    def setup(self, lda, ldb, trans, colmap=None, perm=None, rowmap=False, amode='rows'):
        A = self.A; L = vLane
        if perm is None: perm = trans
        sh = self.WN.bit_length() - 1
        A(f's_lshr_b32 s{sWM}, s{sW_}, {sh}'); A(f's_and_b32 s{sWN}, s{sW_}, {self.WN-1}')
        for q in range(self.nA):
            if amode == 'rows':
                A(f's_mul_i32 s{sT0}, s{sW_}, {8*self.nA}'); A(f's_add_u32 s{sT0}, s{sT0}, {8*q}')
                A(f'v_lshrrev_b32 v3, 3, v{L}'); A(f'v_add_u32 v3, s{sT0}, v3')
                A(f'v_bfe_u32 v4, v3, 1, 3'); A(f'v_and_b32 v5, 7, v{L}'); A('v_xor_b32 v4, v4, v5')
                A(f'v_mul_u32_u24 v3, {lda}, v3'); A(f'v_lshl_add_u32 v3, v4, 4, v3')
                A(f'v_subrev_u32 v{vDA+q}, {1024*q}, v3')
            else:
                ps = 1 if amode == 't16' else 2
                A(f's_mul_i32 s{sT0}, s{sW_}, {self.nA}'); A(f's_add_u32 s{sT0}, s{sT0}, {q}')
                A(f's_lshr_b32 s{sT1}, s{sT0}, {ps}'); A(f's_mul_i32 s{sT1}, s{sT1}, {lda}')
                A(f's_and_b32 s{sT0}, s{sT0}, {(1<<ps)-1}'); A(f's_lshl_b32 s{sT0}, s{sT0}, 10'); A(f's_add_u32 s{sT0}, s{sT0}, s{sT1}')
                A(f's_sub_u32 s{sT0}, s{sT0}, {1024*q}')
                A(f'v_lshlrev_b32 v3, 4, v{L}'); A(f'v_add_u32 v{vDA+q}, s{sT0}, v3')
        lpr = self.rowB // 16; rpi = 64 // lpr; lsh = lpr.bit_length() - 1
        assert self.rowB >= 256
        for q in range(self.nB):
            A(f's_mul_i32 s{sT0}, s{sW_}, {rpi*self.nB}'); A(f's_add_u32 s{sT0}, s{sT0}, {rpi*q}')
            A(f'v_lshrrev_b32 v3, {lsh}, v{L}'); A(f'v_add_u32 v3, s{sT0}, v3')
            A(f'v_and_b32 v4, 3, v3'); A('v_lshlrev_b32 v4, 2, v4'); A(f'v_and_b32 v5, {lpr-1}, v{L}'); A('v_xor_b32 v4, v4, v5')
            if colmap: colmap(A, 4, 5)
            else: A('v_lshlrev_b32 v4, 4, v4')
            if rowmap:
                A('v_and_b32 v5, 35, v3'); A('v_bfe_u32 v6, v3, 2, 1'); A('v_lshl_add_u32 v5, v6, 4, v5')
                A('v_bfe_u32 v6, v3, 3, 2'); A('v_lshl_add_u32 v3, v6, 2, v5')
            A(f'v_mul_u32_u24 v3, {ldb}, v3'); A('v_add_u32 v3, v3, v4')
            A(f'v_subrev_u32 v{vDB+q}, {1024*q}, v3')
        A(f's_mov_b32 s{sBs}, {64*ldb}')
        A(f's_mul_i32 s{sT0}, s{sWM}, {self.MI*32*128}')
        A(f'v_and_b32 v3, 31, v{L}'); A(f'v_lshrrev_b32 v4, 5, v{L}')
        if amode == 'rows':
            A('v_bfe_u32 v5, v3, 1, 3'); A('v_xor_b32 v4, v4, v5')
            A('v_lshlrev_b32 v3, 7, v3'); A('v_lshl_add_u32 v3, v4, 4, v3'); A(f'v_add_u32 v{vRA}, s{sT0}, v3')
            for ks in range(1, 4): A(f'v_xor_b32 v{vRA+ks}, {32*ks}, v{vRA}')
        elif amode == 't16':
            A('v_lshrrev_b32 v5, 4, v3'); A('v_and_b32 v3, 15, v3'); A('v_lshlrev_b32 v3, 4, v3'); A('v_lshl_add_u32 v3, v5, 11, v3'); A('v_lshl_add_u32 v3, v4, 8, v3')
            A(f'v_add_u32 v{vRA}, s{sT0}, v3')
            for ks in range(1, 4): A(f'v_add_u32 v{vRA+ks}, {512*ks}, v{vRA}')
        else:
            A(f'v_lshlrev_b32 v3, 4, v{L}'); A(f'v_add_u32 v{vRA}, s{sT0}, v3')
            for ks in range(1, 4): A(f'v_add_u32 v{vRA+ks}, {1024*ks}, v{vRA}')
        A(f'v_bfe_u32 v3, v{L}, 4, 1'); A(f'v_and_b32 v4, 3, v{L}')
        if perm:
            A('v_and_b32 v5, 1, v4'); A('v_lshrrev_b32 v4, 1, v4'); A('v_lshl_add_u32 v4, v5, 1, v4')
        A('v_lshl_add_u32 v3, v3, 2, v4'); A('v_lshlrev_b32 v3, 3, v3')
        A(f's_mul_i32 s{sT0}, s{sWN}, {self.NI*64}'); A(f'v_add_u32 v3, s{sT0}, v3')
        A(f'v_bfe_u32 v4, v{L}, 2, 2'); A('v_lshlrev_b32 v5, 6, v4'); A('v_xor_b32 v3, v3, v5')
        A(f'v_lshrrev_b32 v5, 5, v{L}'); A('v_lshl_add_u32 v4, v5, 3, v4')
        A(f'v_mul_u32_u24 v4, {self.rowB}, v4'); A(f'v_add_u32 v{vRB}, v3, v4')
        for ni in range(1, self.NI): A(f'v_xor_b32 v{vRB+ni}, {64*ni}, v{vRB}')
        self.trans = trans
        self.astep = {'rows': 128, 't16': 2048, 't32': 4096}[amode]
    def adv(self, sm, lim):
        if self.NBUF == 2 and self.SB == 65536: return [f's_xor_b32 s{sm}, s{sm}, {BUF}']
        return [f's_add_u32 s{sm}, s{sm}, {self.SB}', f's_cmp_ge_u32 s{sm}, {self.SB*self.NBUF}', f's_cselect_b32 s{sT2}, {self.SB*self.NBUF}, 0', f's_sub_u32 s{sm}, s{sm}, s{sT2}']
    def dmaA(self):
        r = [f's_mov_b32 m0, s{sMA}']
        for q in range(self.nA): r.append(f'buffer_load_dwordx4 v{vDA+q}, s[{gA}:{gA+3}], s{sAo} offen offset:{1024*q} {self.fA} lds')
        r += [f's_add_u32 s{sAo}, s{sAo}, {self.astep}', '\n'.join(self.adv(sMA, 0))]
        return r
    def dmaB(self):
        r = [f's_mov_b32 m0, s{sMB}']
        for q in range(self.nB): r.append(f'buffer_load_dwordx4 v{vDB+q}, s[{gB}:{gB+3}], s{sBo_} offen offset:{1024*q} {self.fB} lds')
        r += [f's_add_u32 s{sBo_}, s{sBo_}, s{sBs}', '\n'.join(self.adv(sMB, 0))]
        return r
    def fa(self, st, mi): return vFR + 24 * st + 4 * mi
    def fb(self, st, ni): return vFR + 24 * st + 16 + 4 * ni
    def acc(self, mi, ni): return vACC + 16 * (mi * self.NI + ni)
    def reads(self, st, ks):
        r = []
        for ni in range(self.NI):
            for hf in range(2):
                b = self.fb(st, ni) + 2 * hf
                r.append(f'ds_read_b64_tr_b16 v[{b}:{b+1}], v{vRB+ni} offset:{self.offB + (16*ks + 4*hf)*self.rowB}')
        for mi in range(self.MI):
            a = self.fa(st, mi)
            r.append(f'ds_read_b128 v[{a}:{a+3}], v{vRA+ks} offset:{mi*4096}')
        return r
    def mfmas(self, st, first=False):
        r = []
        for mi in range(self.MI):
            for ni in range(self.NI):
                a, b, c = self.fa(st, mi), self.fb(st, ni), self.acc(mi, ni)
                x, y = (b, a) if self.trans else (a, b)
                if self.fake16:
                    c0 = c + 8 * st
                    y2 = (self.fa(st, mi ^ 1) if self.trans else self.fb(st, ni ^ 1))
                    r.append(f'v_mfma_f32_16x16x32_bf16 v[{c0}:{c0+3}], v[{x}:{x+3}], v[{y}:{y+3}], v[{c0}:{c0+3}]\nv_mfma_f32_16x16x32_bf16 v[{c0+4}:{c0+7}], v[{x}:{x+3}], v[{y2}:{y2+3}], v[{c0+4}:{c0+7}]')
                    continue
                r.append(f'v_mfma_f32_32x32x16_bf16 v[{c}:{c+15}], v[{x}:{x+3}], v[{y}:{y+3}], ' + ('0' if first else f'v[{c}:{c+15}]'))
        return r
    def weave(self, mf, fill, per=2):
        A = self.A
        fill = list(fill)
        for m in mf:
            A(m)
            for _ in range(per):
                if fill: A(fill.pop(0))
        for f in fill: A(f)
    def mainloop(self, nstages):
        A = self.A
        A(f's_mul_i32 s{sMA}, s{sW_}, {self.nA*1024}')
        A(f's_mul_i32 s{sMB}, s{sW_}, {self.nB*1024}'); A(f's_add_u32 s{sMB}, s{sMB}, {self.offB}')
        def emit(l):
            A(l[0]); A('s_nop 0')
            for x in l[1:]: A(x)
        NB = self.NBUF; per = self.nA + self.nB
        for t in range(NB - 1):
            emit(self.dmaA()); emit(self.dmaB())
        emit(self.dmaA())
        for i in range(self.MI * self.NI * 16): A(f'v_mov_b32 v{vACC+i}, 0')
        A(f's_mov_b32 s{sCnt}, {nstages - NB}')
        A(f's_mov_b32 s{sRb}, 0')
        A(f's_waitcnt vmcnt({(NB-2)*per + self.nA})')
        A('s_barrier')
        if getattr(self, 'stamp', None):
            A(f's_memtime s[{self.stamp}:{self.stamp+1}]'); A('s_waitcnt lgkmcnt(0)')
        for x in self.reads(0, 0): A(x)
        regs = [vRA + i for i in range(4)] + [vRB + i for i in range(self.NI)]
        if NB == 2 and self.SB == 65536:
            flip = [f'v_xor_b32 v{r}, {BUF}, v{r}' for r in regs]
        else:
            flip = [f's_add_u32 s{sRb}, s{sRb}, 1\ns_cmp_eq_u32 s{sRb}, {NB}\ns_cselect_b32 s{sRd}, {-self.SB*(NB-1)}, s{sSB}\ns_cselect_b32 s{sRb}, 0, s{sRb}'] + [f'v_add_u32 v{r}, s{sRd}, v{r}' for r in regs]
            A(f's_mov_b32 s{sSB}, {self.SB}')
        nm = self.MI * self.NI
        def wv(mf, fill): self.weave(mf, fill, per=max(2, -(-len(fill) // nm)) if nm < 8 else 2)
        def stage(dB, dA, last, vm):
            A('s_waitcnt lgkmcnt(0)')
            d = self.dmaB() if dB else []
            wv(self.mfmas(0), d[:1] + self.reads(1, 1) + d[1:])
            A('s_waitcnt lgkmcnt(0)')
            wv(self.mfmas(1), self.reads(0, 2))
            A('s_waitcnt lgkmcnt(0)')
            wv(self.mfmas(0), self.reads(1, 3) + flip)
            if last:
                A('s_waitcnt lgkmcnt(0)')
                wv(self.mfmas(1), [])
            else:
                A(f's_waitcnt vmcnt({vm}) lgkmcnt(0)')
                A('s_barrier')
                d = self.dmaA() if dA else []
                wv(self.mfmas(1), d[:1] + self.reads(0, 0) + d[1:])
        top = A.uid('gl')
        A.label(top)
        stage(True, True, False, (NB - 2) * per)
        A(f's_sub_u32 s{sCnt}, s{sCnt}, 1'); A(f's_cmp_lg_u32 s{sCnt}, 0'); A(f's_cbranch_scc1 {top}')
        for k in range(NB):
            stage(k == 0, False, k == NB - 1, max(0, NB - 2 - k) * per)
        back = (nstages % NB) * self.SB
        if back:
            for r in regs: A(f'v_subrev_u32 v{r}, {back}, v{r}')
        A('s_nop 15')

import struct
def fhex(f): return '0x%08x' % struct.unpack('<I', struct.pack('<f', f))[0]
LOG2E = 1.4426950408889634
WSR = 's[8:11]'

def pack8(A, dst, regs):
    for q in range(4): A(f'v_cvt_pk_bf16_f32 v{dst+q}, v{regs[2*q]}, v{regs[2*q+1]}')

def epi_frag(G, kind, stflag=''):
    A = G.A; L = vLane
    A(f'v_and_b32 v3, 31, v{L}'); A(f'v_lshrrev_b32 v4, 5, v{L}')
    A('v_and_b32 v5, 15, v3'); A('v_lshrrev_b32 v6, 4, v3')
    A('v_lshl_add_u32 v5, v4, 4, v5'); A('v_lshlrev_b32 v5, 4, v5'); A('v_lshl_add_u32 v7, v6, 10, v5')
    ush = 11 if kind == 'Q' else 12
    base = {'K': KVF, 'V': KVF + 2048, 'Q': QX}[kind]
    A(f's_lshr_b32 s{sT0}, s{sCol}, 5'); A(f's_mul_i32 s{sT1}, s{sWN}, {G.NI}'); A(f's_add_u32 s{sT0}, s{sT0}, s{sT1}'); A(f's_lshl_b32 s{sT0}, s{sT0}, 6')
    A(f's_lshr_b32 s{sT1}, s{sRow}, 5'); A(f's_add_u32 s{sT0}, s{sT0}, s{sT1}'); A(f's_mul_i32 s{sT1}, s{sWM}, {G.MI}'); A(f's_add_u32 s{sT0}, s{sT0}, s{sT1}')
    A(f's_lshl_b32 s{sT0}, s{sT0}, {ush}'); A(f's_add_u32 s{sT0}, s{sT0}, {base}')
    k = 0
    for ni in range(G.NI):
        for mi in range(G.MI):
            c = G.acc(mi, ni)
            A(f's_add_u32 s{sT1}, s{sT0}, {(ni*64 + mi) << ush}')
            for hf in range(2):
                regs = [c + 8*hf + i for i in range(8)] if kind != 'V' else [c + 4*hf, c + 4*hf + 1, c + 8 + 4*hf, c + 9 + 4*hf, c + 4*hf + 2, c + 4*hf + 3, c + 10 + 4*hf, c + 11 + 4*hf]
                d = vFR + 4 * (k % 12); k += 1
                pack8(A, d, regs)
                A(f'buffer_store_dwordx4 v[{d}:{d+3}], v7, {WSR}, s{sT1} offen offset:{512*hf} {stflag}')

def epi_rows(G, srd, ld, base, regs_of=None, stflag=''):
    A = G.A; L = vLane
    A(f'v_and_b32 v3, 31, v{L}'); A(f'v_lshrrev_b32 v4, 5, v{L}')
    A(f'v_mul_u32_u24 v3, {ld}, v3'); A('v_lshl_add_u32 v7, v4, 4, v3')
    A(f's_mul_i32 s{sT0}, s{sWM}, {G.MI*32}'); A(f's_add_u32 s{sT0}, s{sT0}, s{sRow}'); A(f's_mul_i32 s{sT0}, s{sT0}, {ld}')
    A(f's_mul_i32 s{sT1}, s{sWN}, {G.NI*32}'); A(f's_add_u32 s{sT1}, s{sT1}, s{sCol}'); A(f's_lshl_b32 s{sT1}, s{sT1}, 1')
    A(f's_add_u32 s{sT0}, s{sT0}, s{sT1}'); A(f's_add_u32 s{sT0}, s{sT0}, {base}')
    k = 0
    for mi in range(G.MI):
        A(f's_add_u32 s{sT1}, s{sT0}, {mi*32*ld}')
        for ni in range(G.NI):
            c = regs_of(mi, ni) if regs_of else G.acc(mi, ni)
            for hf in range(2):
                d = vFR + 4 * (k % 4); k += 1
                pack8(A, d, [c + 8*hf + i for i in range(8)])
                A(f'buffer_store_dwordx4 v[{d}:{d+3}], v7, {srd}, s{sT1} offen offset:{64*ni + 32*hf} {stflag}')

sL2E, sEps, sHiM = 46, 47, 48
def phi_consts(A):
    A(f's_mov_b32 s{sL2E}, {fhex(LOG2E)}'); A(f's_mov_b32 s{sEps}, {fhex(1e-6)}'); A(f's_mov_b32 s{sHiM}, 0xffff0000')
def phi_pack(A, c, dst, t):
    for h in range(2):
        b = c + 8 * h
        for q in range(4): A(f'v_cvt_pk_bf16_f32 v{t+q}, v{b+2*q}, v{b+2*q+1}')
        for q in range(4):
            A(f'v_lshlrev_b32 v{b+2*q}, 16, v{t+q}'); A(f'v_and_b32 v{b+2*q+1}, s{sHiM}, v{t+q}')
        for i in range(8): A(f'v_mul_f32 v{t+i}, s{sL2E}, v{b+i}')
        for i in range(8): A(f'v_exp_f32 v{t+i}, v{t+i}')
        for i in range(8):
            A(f'v_cmp_lt_f32 vcc, 0, v{b+i}'); A(f'v_add_f32 v{b+i}, 1.0, v{b+i}'); A('s_nop 0')
            A(f'v_cndmask_b32 v{b+i}, v{t+i}, v{b+i}, vcc')
        for i in range(8): A(f'v_add_f32 v{b+i}, s{sEps}, v{b+i}')
        for q in range(4): A(f'v_cvt_pk_bf16_f32 v{dst+4*h+q}, v{b+2*q}, v{b+2*q+1}')

def akv_colmap(A, v, t):
    A(f'v_bfe_u32 v{t}, v{v}, 2, 1'); A(f'v_lshlrev_b32 v{t}, 11, v{t}'); A(f'v_add_u32 v{t}, 2048, v{t}')
    A(f'v_lshrrev_b32 v6, 3, v{v}'); A(f'v_lshl_add_u32 v{t}, v6, 6, v{t}')
    A(f'v_and_b32 v{v}, 3, v{v}'); A(f'v_lshl_add_u32 v{v}, v{v}, 4, v{t}')

def epi_akv(G, stflag=''):
    A = G.A
    phi_consts(A)
    vK, vV, vO1, vD, vZ, t = 64, 72, 80, 24, 40, 88
    for i in range(4): A(f'v_mov_b32 v{vO1+i}, 0x3f803f80')
    for mi in range(G.MI):
        phi_pack(A, G.acc(mi, 0), vK, t)
        c = G.acc(mi, 1)
        for q in range(8): A(f'v_cvt_pk_bf16_f32 v{vV+q}, v{c+2*q}, v{c+2*q+1}')
        A('s_nop 1')
        for h in range(2):
            f = mi == 0 and h == 0
            A(f'v_mfma_f32_32x32x16_bf16 v[{vD}:{vD+15}], v[{vK+4*h}:{vK+4*h+3}], v[{vV+4*h}:{vV+4*h+3}], ' + ('0' if f else f'v[{vD}:{vD+15}]'))
            A(f'v_mfma_f32_32x32x16_bf16 v[{vZ}:{vZ+15}], v[{vK+4*h}:{vK+4*h+3}], v[{vO1}:{vO1+3}], ' + ('0' if f else f'v[{vZ}:{vZ+15}]'))
    A(f'v_lshlrev_b32 v7, 4, v{vLane}')
    A(f's_lshr_b32 s{sT0}, s{sRow}, 7'); A(f's_add_u32 s{sT0}, s{sT0}, s{sWM}'); A(f's_lshl_b32 s{sT0}, s{sT0}, 5')
    A(f's_add_u32 s{sT0}, s{sT0}, s{sCol}'); A(f's_add_u32 s{sT0}, s{sT0}, s{sWN}'); A(f's_lshl_b32 s{sT0}, s{sT0}, 13'); A(f's_add_u32 s{sT0}, s{sT0}, {KVP}')
    A(f's_add_u32 s{sT1}, s{sT0}, 4096')
    A('s_nop 7')
    for q in range(4): A(f'buffer_store_dwordx4 v[{vD+4*q}:{vD+4*q+3}], v7, {WSR}, s{sT0} offen offset:{1024*q} {stflag}')
    for q in range(4): A(f'buffer_store_dwordx4 v[{vZ+4*q}:{vZ+4*q+3}], v7, {WSR}, s{sT1} offen offset:{1024*q} {stflag}')

def kv_reduce(A, sUnit, ldflag='', stflag=''):
    A(f'v_lshlrev_b32 v7, 4, v{vLane}')
    A(f's_lshl_b32 s{sT0}, s{sUnit}, 12'); A(f's_add_u32 s{sT0}, s{sT0}, {KVP}')
    for half in range(2):
        for p in range(8):
            for q in range(4):
                d = 128 + 16 * p + 4 * q
                A(f'buffer_load_dwordx4 v[{d}:{d+3}], v7, {WSR}, s{sT0} offen offset:{1024*q} {ldflag}')
            A(f's_add_u32 s{sT0}, s{sT0}, {32*8192}')
        A('s_waitcnt vmcnt(0)')
        for p in range(8):
            for q in range(8):
                d = 128 + 16 * p + 2 * q
                if half == 0 and p == 0: A(f'v_pk_add_f32 v[{64+2*q}:{65+2*q}], v[{d}:{d+1}], 0')
                else: A(f'v_pk_add_f32 v[{64+2*q}:{65+2*q}], v[{64+2*q}:{65+2*q}], v[{d}:{d+1}]')
    for q in range(8): A(f'v_cvt_pk_bf16_f32 v{80+q}, v{64+2*q}, v{65+2*q}')
    A(f's_lshl_b32 s{sT0}, s{sUnit}, 11'); A(f's_add_u32 s{sT0}, s{sT0}, {KVB}')
    for t in range(2): A(f'buffer_store_dwordx4 v[{80+4*t}:{83+4*t}], v7, {WSR}, s{sT0} offen offset:{1024*t} {stflag}')

def epi_aq(G, ldflag='', stflag=''):
    A = G.A; L = vLane
    phi_consts(A)
    A(f'v_and_b32 v3, 51, v{L}'); A(f'v_bfe_u32 v4, v{L}, 2, 1'); A('v_lshl_add_u32 v3, v4, 3, v3'); A(f'v_bfe_u32 v4, v{L}, 3, 1'); A('v_lshl_add_u32 v3, v4, 2, v3')
    A('v_lshlrev_b32 v6, 4, v3')
    A(f's_lshr_b32 s{sT0}, s{sCol}, 5'); A(f's_mul_i32 s{sT1}, s{sWN}, {G.NI}'); A(f's_add_u32 s{sT0}, s{sT0}, s{sT1}')
    A(f's_lshl_b32 s{sT0}, s{sT0}, 12'); A(f's_add_u32 s{sT0}, s{sT0}, {KVB}')
    vKV = 24
    for ni in range(G.NI):
        for q in range(4):
            d = vKV + 16 * ni + 4 * q
            A(f'buffer_load_dwordx4 v[{d}:{d+3}], v6, {WSR}, s{sT0} offen offset:{1024*q} {ldflag}')
        A(f's_add_u32 s{sT0}, s{sT0}, 4096')
    vP, vZ, t = 80, 96, 88
    first = True
    for mi in range(G.MI):
        for ni in range(G.NI):
            c = G.acc(mi, ni)
            phi_pack(A, c, vP, t)
            if first: A('s_waitcnt vmcnt(0)'); first = False
            A('s_nop 1')
            k = vKV + 16 * ni
            A(f'v_mfma_f32_32x32x16_bf16 v[{vZ}:{vZ+15}], v[{k+8}:{k+11}], v[{vP}:{vP+3}], 0')
            A(f'v_mfma_f32_32x32x16_bf16 v[{vZ}:{vZ+15}], v[{k+12}:{k+15}], v[{vP+4}:{vP+7}], v[{vZ}:{vZ+15}]')
            A(f'v_mfma_f32_32x32x16_bf16 v[{c}:{c+15}], v[{k}:{k+3}], v[{vP}:{vP+3}], 0')
            A(f'v_mfma_f32_32x32x16_bf16 v[{c}:{c+15}], v[{k+4}:{k+7}], v[{vP+4}:{vP+7}], v[{c}:{c+15}]')
            A('s_nop 9')
            A(f'v_add_f32 v{t}, s{sEps}, v{vZ}'); A(f'v_rcp_f32 v{t}, v{t}'); A('s_nop 0')
            for i in range(16): A(f'v_mul_f32 v{c+i}, v{c+i}, v{t}')
    A(f'v_lshlrev_b32 v7, 4, v{L}')
    A(f's_lshr_b32 s{sT0}, s{sRow}, 5'); A(f's_mul_i32 s{sT1}, s{sWM}, {G.MI}'); A(f's_add_u32 s{sT0}, s{sT0}, s{sT1}'); A(f's_lshl_b32 s{sT0}, s{sT0}, 5')
    A(f's_lshr_b32 s{sT1}, s{sCol}, 5'); A(f's_add_u32 s{sT0}, s{sT0}, s{sT1}'); A(f's_mul_i32 s{sT1}, s{sWN}, {G.NI}'); A(f's_add_u32 s{sT0}, s{sT0}, s{sT1}')
    A(f's_lshl_b32 s{sT0}, s{sT0}, 11'); A(f's_add_u32 s{sT0}, s{sT0}, {OA}')
    k = 0
    for mi in range(G.MI):
        for ni in range(G.NI):
            c = G.acc(mi, ni)
            for hf in range(2):
                d = vFR + 4 * (k % 4); k += 1
                pack8(A, d, [c + 8*hf + i for i in range(8)])
                A(f'buffer_store_dwordx4 v[{d}:{d+3}], v7, {WSR}, s{sT0} offen offset:{2048*ni + 1024*hf} {stflag}')
        A(f's_add_u32 s{sT0}, s{sT0}, 65536')
```

```python
MB = 1 << 20
WS_BYTES = 256 * MB
QX = 0
KX = 16 * MB
VXF = 32 * MB
KVF = 16 * MB
OB = 48 * MB
KM = 64 * MB
VMF = 68 * MB
CBUF = 72 * MB
ABUF = 74 * MB
BBUF = 75 * MB
DBUF = 75 * MB + 256 * 1024
OA = 78 * MB
KVP = 82 * MB
KVB = 86 * MB
PROF = 96 * MB
KA = dict(A_x=0, A_wqkv=8, A_wo=16, B_x=24, B_mem0=32, B_Wq=40, B_Wk=48, B_Wv=56, B_Wo=64, seg=72, out=80, dbg=88, ws=96)
F_TICKET = 0
F_QUEUE = 32
F_READY = 64
F_KV = 80
F_REC = 112
F_Q = 144
F_T3 = 176
F_AKV = 208
F_KVB = 224
F_AQ = 240
```

```python
from asmlib import *
from layout import *

L_MEM = 0
L_QP = 16384
QP_ROW = 144
QP_PART = 16 * QP_ROW
L_VP = 26624
L_RED = 30720
L_PF = 34816
L_TICKET = 163840 - 256
REC_LDS = 163840

S_WS = 8
S_W = 12
S_M0 = 16
S_DBG = 20
sX, sC, sW, sH, sJ, sStep, sBud = 24, 25, 26, 27, 28, 29, 30
sA, sB, sCc, sD = 31, 32, 33, 34
sKX, sVX, sSave = 35, 36, 37
sT0, sT1, sT2 = 38, 39, 40
sSent = 41
sScale = 42
sPar = 43
sAo, sBo, sDo = 44, 45, 46
sP = 48
sPF = 64
sVote = 59

def gen_rec(A, par=None, flags=False, pst=False, touch=0, wnt='', slog=False, plainsave=False, prof=None, dD=32, dB=32, dC=112, dA=24, gap=12, nsteps=64, exit_label='L_end', nopf=False, nosave=False, dH=60, dP=36, prio=2, rt=False, vfill=True, fillw=10, dC2=64, flip=1, only=None, sparse=2, dC3=0, ncopy=1, acc=False, warm=2):
    stamps = []
    def stamp(name):
        if prof is None or (only and name not in only): return
        if name not in stamps: stamps.append(name)
        r = sPF + 2 * stamps.index(name)
        assert r + 1 < 100
        lab = A.uid('st')
        A(f's_cmp_lg_u32 s{sStep}, {prof}'); A(f's_cbranch_scc1 {lab}')
        A(f"{'s_memrealtime' if rt else 's_memtime'} s[{r}:{r+1}]"); A('s_waitcnt lgkmcnt(0)')
        A.label(lab)
    def astamp(name, wave):
        if not acc: return
        if name not in stamps: stamps.append(name)
        r = sPF + 2 * stamps.index(name)
        lab = A.uid('as')
        A(f's_cmp_lg_u32 s{sW}, {wave}'); A(f's_cbranch_scc1 {lab}')
        A(f's_memtime s[{sP}:{sP+1}]')
        A(f's_sub_u32 s{sP+2}, s{sStep}, 4'); A(f's_cmp_ge_u32 s{sP+2}, 56'); A('s_waitcnt lgkmcnt(0)')
        A(f's_cselect_b32 s{sP}, 0, s{sP}'); A(f's_add_u32 s{r}, s{r}, s{sP}')
        A.label(lab)
    def delay(n):
        while n > 0:
            k = min(n, 16); A(f's_nop {k-1}'); n -= k
    def vdelay(n):
        if not vfill: return delay(n)
        while n > 0:
            A('v_mov_b32 v0, v0'); n -= 1
            k = min(n, sparse)
            if k: A(f's_nop {k-1}'); n -= k
    def check(regs, tmp, retry):
        A(f'v_max3_u32 v{tmp}, v{regs[0]}, v{regs[1]}, v{regs[2]}')
        rest = regs[3:]
        while len(rest) >= 2:
            A(f'v_max3_u32 v{tmp}, v{tmp}, v{rest[0]}, v{rest[1]}'); rest = rest[2:]
        if rest: A(f'v_max_u32 v{tmp}, v{tmp}, v{rest[0]}')
        A(f'v_cmp_eq_u32 vcc, -1, v{tmp}')
        A(f's_cbranch_vccnz {retry}')
    def poll_head():
        top = A.uid('poll')
        A.label(top)
        A(f's_sub_u32 s{sBud}, s{sBud}, 1'); A(f's_cbranch_scc1 {exit_label}')
        return top
    WS = f's[{S_WS}:{S_WS+3}]'
    DBG = f's[{S_DBG}:{S_DBG+3}]'
    SC = 'sc1' if flags else ''
    SV = '' if plainsave else SC
    A(f's_load_dwordx2 s[{sP}:{sP+1}], s[0:1], {KA["B_Wq"]}')
    A(f's_load_dwordx2 s[{sP+2}:{sP+3}], s[0:1], {KA["B_Wk"]}')
    A(f's_load_dwordx2 s[{sP+4}:{sP+5}], s[0:1], {KA["B_Wv"]}')
    A(f's_load_dwordx2 s[{sP+6}:{sP+7}], s[0:1], {KA["B_Wo"]}')
    A(f's_load_dwordx2 s[{sP+8}:{sP+9}], s[0:1], {KA["B_mem0"]}')
    A('v_lshrrev_b32 v1, 6, v0')
    A('v_and_b32 v2, 63, v0')
    A(f'v_readfirstlane_b32 s{sW}, v1')
    A('v_and_b32 v3, 15, v2')
    A('v_lshrrev_b32 v4, 4, v2')
    A('v_bfe_u32 v5, v2, 3, 1')
    A('v_and_b32 v6, 7, v2')
    A('v_lshlrev_b32 v7, 4, v2')
    A(f's_lshr_b32 s{sH}, s{sC}, 2'); A(f's_lshl_b32 s{sT0}, s{sX}, 3'); A(f's_add_u32 s{sH}, s{sH}, s{sT0}')
    A(f's_and_b32 s{sJ}, s{sC}, 3')
    A(f's_mov_b32 s{sBud}, 0x40000')
    A(f's_mov_b32 s{sSent}, 0xfffffffe')
    A(f's_mov_b32 s{sScale}, {float_hex(128 ** -0.5 * 1.4426950408889634)}')
    A(f's_mov_b32 s{sPar}, 0')
    A(f's_mov_b32 s{sStep}, 0')
    if prof is not None:
        for r in range(sPF, 86 if pst else 100): A(f's_mov_b32 s{r}, 0')
    A('s_waitcnt lgkmcnt(0)')
    srd(A, S_M0, sP + 8, 8 * 1024 * 2)
    def pstamp(k):
        if pst: A(f's_memrealtime s[{88+2*k}:{89+2*k}]'); A('s_waitcnt lgkmcnt(0)')
    pstamp(1)
    def inbox(i):
        A(f's_xor_b32 s{sT0}, s{sX}, {i}')
        A(f's_lshl_b32 s{sT0}, s{sT0}, 5'); A(f's_add_u32 s{sT0}, s{sT0}, s{sC}'); A(f's_lshl_b32 s{sT0}, s{sT0}, 14')
        A(f's_add_u32 s{sT0}, s{sT0}, s{sPar}')
    for i in range(4): A(f'v_mov_b32 v{8+i}, -1')
    inbox(0)
    A(f's_lshl_b32 s{sT1}, s{sW}, 10'); A(f's_add_u32 s{sT0}, s{sT0}, s{sT1}')
    A(f's_add_u32 s{sT0}, s{sT0}, {CBUF}')
    A(f'buffer_store_dwordx4 v[8:11], v7, {WS}, s{sT0} offen sc1')
    A(f's_add_u32 s{sT0}, s{sT0}, 8192')
    A(f'buffer_store_dwordx4 v[8:11], v7, {WS}, s{sT0} offen sc1')
    lab = A.uid('ini')
    A(f's_cmp_ge_u32 s{sW}, 2'); A(f's_cbranch_scc1 {lab}')
    A(f's_lshl_b32 s{sT0}, s{sW}, 18'); A(f's_lshl_b32 s{sT1}, s{sH}, 13'); A(f's_add_u32 s{sT0}, s{sT0}, s{sT1}'); A(f's_add_u32 s{sT0}, s{sT0}, {ABUF}')
    A(f's_lshl_b32 s{sT1}, s{sJ}, 10'); A(f's_add_u32 s{sT1}, s{sT1}, s{sT0}')
    A(f'buffer_store_dwordx4 v[8:11], v7, {WS}, s{sT1} offen')
    A(f's_lshl_b32 s{sT1}, s{sJ}, 8'); A(f's_add_u32 s{sT1}, s{sT1}, s{sT0}'); A(f's_add_u32 s{sT1}, s{sT1}, 4096')
    A('v_lshlrev_b32 v12, 2, v2')
    A(f'buffer_store_dword v8, v12, {WS}, s{sT1} offen')
    A('v_lshlrev_b32 v12, 3, v2')
    A(f's_lshl_b32 s{sT0}, s{sW}, 16'); A(f's_lshl_b32 s{sT1}, s{sX}, 14'); A(f's_add_u32 s{sT0}, s{sT0}, s{sT1}')
    A(f's_lshl_b32 s{sT1}, s{sC}, 9'); A(f's_add_u32 s{sT0}, s{sT0}, s{sT1}')
    A(f's_add_u32 s{sT1}, s{sT0}, {BBUF}')
    A(f'buffer_store_dwordx2 v[8:9], v12, {WS}, s{sT1} offen')
    A(f's_add_u32 s{sT1}, s{sT0}, {DBUF}')
    A(f'buffer_store_dwordx2 v[8:9], v12, {WS}, s{sT1} offen')
    A.label(lab)
    A('s_waitcnt vmcnt(0)')
    A('s_barrier')
    lab = A.uid('rdy')
    A(f's_cmp_lg_u32 s{sW}, 0'); A(f's_cbranch_scc1 {lab}')
    A(f'v_mov_b32 v12, {F_READY}'); A(f'v_mov_b32 v13, s{sVote}')
    A('s_mov_b64 exec, 1')
    A(f'buffer_atomic_add v13, v12, s[{S_DBG}:{S_DBG+3}], 0 offen sc1')
    A('s_mov_b64 exec, -1')
    A.label(lab)
    A('v_lshrrev_b32 v12, 2, v2'); A('v_and_b32 v13, 3, v2'); A('v_lshlrev_b32 v13, 4, v13')
    A('v_bfe_u32 v14, v12, 1, 1'); A('v_lshlrev_b32 v14, 3, v14'); A('v_lshrrev_b32 v15, 2, v12'); A('v_lshl_add_u32 v14, v15, 1, v14')
    A('v_and_b32 v15, 1, v12'); A('v_add_u32 v14, v14, v15')
    A('v_lshl_add_u32 v14, v14, 13, v13')
    A(f's_lshl_b32 s{sT0}, s{sH}, 8'); A(f's_lshl_b32 s{sT1}, s{sJ}, 6'); A(f's_add_u32 s{sT0}, s{sT0}, s{sT1}')
    A(f'v_add_u32 v14, s{sT0}, v14')
    A('v_and_b32 v15, 1, v12'); A('v_lshlrev_b32 v15, 4, v15'); A('v_lshrrev_b32 v16, 3, v2'); A('v_add_u32 v15, v15, v16')
    A('v_lshl_add_u32 v15, v15, 11, v13')
    A(f's_lshl_b32 s{sT0}, s{sX}, 21'); A(f's_lshl_b32 s{sT1}, s{sC}, 6'); A(f's_add_u32 s{sT0}, s{sT0}, s{sT1}')
    A(f'v_add_u32 v15, s{sT0}, v15')
    def sel_srd(pa, pb):
        A(f's_cmp_lt_u32 s{sW}, 4')
        A(f's_cselect_b32 s{S_W}, s{pa}, s{pb}')
        A(f's_cselect_b32 s{S_W+1}, s{pa+1}, s{pb+1}')
        A(f's_and_b32 s{S_W+1}, s{S_W+1}, 0xffff')
        A(f's_mov_b32 s{S_W+2}, {8*MB}')
        A(f's_mov_b32 s{S_W+3}, 0x20000')
    def dma_nat():
        A(f's_and_b32 s{sT0}, s{sW}, 3'); A(f's_lshl_b32 s{sT1}, s{sT0}, 21')
        A(f's_lshl_b32 s{sT2}, s{sW}, 14')
        for k in range(16):
            A(f's_mov_b32 m0, s{sT2}')
            A(f's_add_u32 s{sT2}, s{sT2}, 1024')
            A(f'buffer_load_dwordx4 v14, s[{S_W}:{S_W+3}], s{sT1} offen {wnt} lds')
            A(f's_add_u32 s{sT1}, s{sT1}, {16*8192}')
    def touch_pair(pa, pb, second):
        sel_srd(pa, pb)
        A(f's_and_b32 s{sT0}, s{sW}, 3'); A(f's_lshl_b32 s{sT0}, s{sT0}, 3'); A(f's_lshl_b32 s{sT1}, s{sC}, 5'); A(f's_add_u32 s{sT0}, s{sT0}, s{sT1}')
        A(f's_lshl_b32 s{sT1}, s{sT0}, 13'); A(f's_lshl_b32 s{sT2}, s{sX}, 11'); A(f's_add_u32 s{sT1}, s{sT1}, s{sT2}')
        A('v_lshrrev_b32 v18, 5, v2'); A('v_lshlrev_b32 v18, 13, v18'); A('v_and_b32 v19, 31, v2'); A('v_lshl_add_u32 v18, v19, 6, v18')
        A(f's_mov_b32 s3, {2*8192}')
        if second:
            A(f's_lshl_b32 s{sT0}, s{sT0}, 11'); A(f's_lshl_b32 s{sT2}, s{sX}, 21'); A(f's_add_u32 s{sT0}, s{sT0}, s{sT2}')
            A('v_lshlrev_b32 v19, 6, v2')
            A(f's_cmp_lt_u32 s{sW}, 4'); A(f's_cselect_b32 s{sT1}, s{sT1}, s{sT0}'); A('s_cselect_b32 s3, s3, 4096'); A('s_cselect_b64 vcc, -1, 0')
            A('v_cndmask_b32 v18, v19, v18, vcc')
        for k in range(4):
            A(f'buffer_load_dword v{24 + 4*second + k}, v18, s[{S_W}:{S_W+3}], s{sT1} offen')
            A(f's_add_u32 s{sT1}, s{sT1}, s3')
    if touch:
        touch_pair(sP, sP + 2, 0)
        if touch == 1:
            touch_pair(sP + 4, sP + 6, 1); A('s_waitcnt vmcnt(4)')
        elif touch == 2:
            A('s_waitcnt vmcnt(0)'); touch_pair(sP + 4, sP + 6, 1)
        elif touch == 3:
            touch_pair(sP + 4, sP + 6, 1)
        elif touch == 4:
            A('s_waitcnt vmcnt(0)')
    sel_srd(sP, sP + 2)
    dma_nat()
    if touch == 4:
        touch_pair(sP + 4, sP + 6, 1); A('s_waitcnt vmcnt(0)')
    sel_srd(sP + 4, sP + 6)
    lab = A.uid('w2'); lab2 = A.uid('w2e')
    A(f's_and_b32 s{sT0}, s{sW}, 3')
    A(f's_cmp_ge_u32 s{sW}, 4'); A(f's_cbranch_scc1 {lab}')
    A(f's_lshl_b32 s{sT1}, s{sT0}, 21')
    for k in range(16):
        A(f'buffer_load_dwordx4 v[{64+4*k}:{67+4*k}], v14, s[{S_W}:{S_W+3}], s{sT1} offen {wnt}')
        A(f's_add_u32 s{sT1}, s{sT1}, {16*8192}')
    A(f's_branch {lab2}')
    A.label(lab)
    A(f's_lshl_b32 s{sT1}, s{sT0}, 19')
    for k in range(16):
        A(f'buffer_load_dwordx4 v[{64+4*k}:{67+4*k}], v15, s[{S_W}:{S_W+3}], s{sT1} offen {wnt}')
        A(f's_add_u32 s{sT1}, s{sT1}, {(8 if k % 2 == 0 else 24) * 2048}')
    A.label(lab2)
    A('v_bfe_u32 v16, v2, 2, 2'); A('v_lshl_add_u32 v16, v4, 3, v16'); A('v_lshlrev_b32 v16, 6, v16')
    A('v_and_b32 v17, 3, v2'); A('v_lshl_add_u32 v16, v17, 3, v16')
    A('s_waitcnt vmcnt(16)')
    A('s_barrier')
    pstamp(2)
    lab = A.uid('w1')
    A(f's_cmp_ge_u32 s{sW}, 4'); A(f's_cbranch_scc1 {lab}')
    def load_pair(addrX, offX, addrY, offY, pre, dst):
        for p in range(4):
            A(f'ds_read_b64_tr_b16 v[{32+2*p}:{33+2*p}], v{addrX} offset:{offX + (p>>1)*2048 + (p&1)*256}')
            A(f'ds_read_b64_tr_b16 v[{40+2*p}:{41+2*p}], v{addrY} offset:{offY + (p>>1)*2048 + (p&1)*256}')
        A('s_waitcnt lgkmcnt(0)')
        mv = 'v_mov_b32 v'
        if pre == 'a': dst += 128
        for r in range(8):
            A(f'{mv}{dst+r}, v{(32 if r % 2 == 0 else 40) + r}')
            A(f'{mv}{dst+8+r}, v{(40 if r % 2 == 0 else 32) + r}')
    A(f's_lshl_b32 s{sT0}, s{sW}, 14')
    A(f'v_add_u32 v17, s{sT0}, v16'); A('v_add_u32 v19, 65536, v17')
    for i in range(4):
        for t in range(2):
            load_pair(17, i * 4096 + t * 32, 19, i * 4096 + t * 32, 'a', (2 * i + t) * 16)
    A('s_waitcnt lgkmcnt(0)')
    A.label(lab)
    A('s_barrier')
    A(f's_lshl_b32 s{sT0}, s{sW}, 14'); A(f'v_add_u32 v17, s{sT0}, v7')
    A('s_waitcnt vmcnt(0)')
    pstamp(3)
    for k in range(16): A(f'ds_write_b128 v17, v[{64+4*k}:{67+4*k}] offset:{1024*k}')
    A('s_waitcnt lgkmcnt(0)')
    lab = A.uid('w3'); lab2 = A.uid('w3e')
    A(f's_lshl_b32 s{sT0}, s{sW}, 14')
    A(f'v_add_u32 v17, s{sT0}, v16')
    A(f's_cmp_lt_u32 s{sW}, 4'); A(f's_cbranch_scc1 {lab}')
    for dst, pre in ((0, 'a'), (64, 'v')):
        for i in range(4):
            load_pair(17, i * 4096, 17, i * 4096 + 32, pre, dst + i * 16)
        if pre == 'a':
            A(f's_branch {lab2}'); A.label(lab)
    A.label(lab2)
    A('s_waitcnt lgkmcnt(0)')
    pstamp(4)
    A(f'v_mov_b32 v12, {F_READY}')
    top = poll_head()
    A(f'buffer_load_dword v13, v12, s[{S_DBG}:{S_DBG+3}], 0 offen sc1')
    A('s_waitcnt vmcnt(0)')
    A(f'v_readfirstlane_b32 s{sT0}, v13')
    A('s_nop 3')
    A(f's_and_b32 s{sT1}, s{sT0}, 0xffff'); A(f's_cmp_lt_u32 s{sT1}, 128'); A(f's_cbranch_scc1 {top}')
    A(f's_lshr_b32 s{sT0}, s{sT0}, 16'); A(f's_cmp_gt_u32 s{sT0}, 64'); A(f's_cselect_b32 s{sPar}, 8192, 0')
    if par is not None: A(f's_mov_b32 s{sPar}, {par * 8192}')
    A('s_barrier')
    A(f's_mov_b32 s{sA}, {ABUF}'); A(f's_mov_b32 s{sB}, {BBUF}'); A(f's_mov_b32 s{sCc}, {CBUF}')
    A(f's_mov_b32 s{sBo}, {BBUF + 65536}')
    A(f's_mov_b32 s{sD}, {DBUF + 65536}')
    A(f's_mov_b32 s{sDo}, {DBUF}')
    A(f's_lshl_b32 s{sKX}, s{sX}, 5'); A(f's_add_u32 s{sKX}, s{sKX}, s{sC}'); A(f's_lshl_b32 s{sKX}, s{sKX}, 18'); A(f's_add_u32 s{sKX}, s{sKX}, {KVF}'); A(f's_mov_b32 s{sSave}, 0')
    def advance():
        A(f's_xor_b32 s{sA}, s{sA}, {1<<18}'); A(f's_xor_b32 s{sB}, s{sB}, 65536'); A(f's_xor_b32 s{sBo}, s{sBo}, 65536')
        A(f's_xor_b32 s{sCc}, s{sCc}, 4096'); A(f's_xor_b32 s{sD}, s{sD}, 65536'); A(f's_xor_b32 s{sDo}, s{sDo}, 65536')
        if not nosave: A(f's_add_u32 s{sSave}, s{sSave}, 65536')
        if not nopf: A(f's_add_u32 s{sKX}, s{sKX}, 4096')
        A(f's_add_u32 s{sStep}, s{sStep}, 1')
    assert (ABUF >> 18) & 1 == 0 and (BBUF >> 16) & 1 == 0 and (DBUF >> 16) & 1 == 0 and (CBUF >> 12) & 1 == 0
    vIdx = 20
    A(f'v_mov_b32 v{vIdx}, 0x4444'); A('v_mov_b32 v12, 0xeeee'); A('v_cmp_eq_u32 vcc, 1, v5'); A('s_nop 1')
    A(f'v_cndmask_b32 v{vIdx}, v{vIdx}, v12, vcc')
    A('v_and_b32 v18, 1, v4'); A('v_lshlrev_b32 v18, 2, v18'); A('v_lshrrev_b32 v12, 1, v4'); A('v_add_u32 v18, v18, v12')
    vGoff = 21
    sU = 47
    sPend, sTodo, sFc = sT0, sT1, 58
    A(f's_and_b32 s{sU}, s{sW}, 3')
    A(f's_mov_b32 s{sFc}, 0')
    A(f's_lshl_b32 s{sT0}, s{sU}, 12'); A(f's_lshl_b32 s{sT1}, s{sX}, 14'); A(f's_add_u32 s{sT0}, s{sT0}, s{sT1}')
    A(f'v_add_u32 v{vGoff}, s{sT0}, v7')
    vM = 32
    vN = 48
    vT = 8
    vId2 = 1
    A(f'v_xor_b32 v{vId2}, 0xaaaa, v{vIdx}')
    tails = []
    def smf(acc, i, w, second):
        src = (vN if second else vM) + 4 * i
        return f'v_smfmac_f32_16x16x64_bf16 v[{acc}:{acc+3}], v[{src}:{src+3}], {w}, v{vId2 if second else vIdx}'
    def rot(i, q): return f'v_mov_b32_dpp v{vN+4*i+q}, v{vM+4*i+q} row_ror:8 row_mask:0xf bank_mask:0xf'
    def gather(soff, ntile, vacc, name, gp):
        def ld(i): A(f'buffer_load_dwordx4 v[{vM+4*i}:{vM+4*i+3}], v{vGoff}, {WS}, s{soff} offen offset:{1024*i} sc1')
        def chk(i):
            b = vM + 4 * i
            A(f'v_max3_u32 v{vT}, v{b}, v{b+1}, v{b+2}'); A(f'v_max_u32 v{vT}, v{vT}, v{b+3}'); A(f'v_cmp_eq_u32 vcc, -1, v{vT}')
        def X(i): return [smf(vacc + 4 * T, i, f'v[{128+(ntile*i+T)*16}:{128+(ntile*i+T)*16+7}]', False) for T in range(ntile)]
        def Y(i): return [smf(vacc + 4 * T, i, f'v[{128+(ntile*i+T)*16+8}:{128+(ntile*i+T)*16+15}]', True) for T in range(ntile)]
        def mm(i): return [rot(i, q) for q in range(4)] + X(i) + (['s_nop 0'] if ntile == 1 else []) + Y(i)
        done = A.uid('gdone'); ent = [A.uid('gent') for _ in range(4)]
        for i in range(4):
            ld(i)
            vdelay(gp if i < 3 else fillw)
        A('s_waitcnt vmcnt(3)')
        stamp(f'{name}0')
        chk(0)
        for q in range(4): A(rot(0, q))
        A(f's_cbranch_vccnz {ent[0]}')
        for i in range(4):
            x, y = X(i), Y(i)
            if ntile == 2:
                A(x[0])
                if i > 0: A(rot(i, 2))
                A(x[1])
                if i > 0: A(rot(i, 3))
                if i < 3:
                    A(f's_waitcnt vmcnt({2-i})')
                    if i == 2: stamp(f'{name}3')
                    chk(i + 1)
                    A(y[0]); A(rot(i + 1, 0)); A(y[1]); A(rot(i + 1, 1))
                    A(f's_cbranch_vccnz {ent[i+1]}')
                else:
                    A('s_nop 1'); A(y[0]); A(y[1])
            else:
                A(x[0])
                if i < 3:
                    A(y[0])
                    A(f's_waitcnt vmcnt({2-i})')
                    if i == 2: stamp(f'{name}3')
                    chk(i + 1)
                    for q in range(4): A(rot(i + 1, q))
                    A(f's_cbranch_vccnz {ent[i+1]}')
                else:
                    A(y[0])
        A.label(done)
        def tail():
            base = A.uid('q')
            def nxt(mask, pos):
                for k in range(1, 5):
                    p = (pos + k) & 3
                    if mask >> p & 1: return p
            def st(mask, pos): return f'{base}_{mask}_{pos}'
            def bad(mask, pos):
                ld(pos)
                A(f's_sub_u32 s{sBud}, s{sBud}, 1'); A(f's_cbranch_scc1 {exit_label}')
                A(f's_branch {st(mask, nxt(mask, pos))}')
            for i in range(4):
                A.label(ent[i]); bad((15 << i) & 15, i)
            for mask in range(1, 16):
                n = bin(mask).count('1')
                for pos in range(4):
                    if not mask >> pos & 1: continue
                    bl = A.uid('bad')
                    if n == 1:
                        A.label(bl); ld(pos)
                        A(f's_sub_u32 s{sBud}, s{sBud}, 1'); A(f's_cbranch_scc1 {exit_label}')
                    A.label(st(mask, pos))
                    A(f's_waitcnt vmcnt({n-1})')
                    chk(pos)
                    for q in range(4): A(rot(pos, q))
                    A(f's_cbranch_vccnz {bl}')
                    for x in X(pos) + Y(pos): A(x)
                    m2 = mask & ~(1 << pos)
                    A(f's_branch {st(m2, nxt(m2, pos)) if m2 else done}')
                    if n > 1:
                        A.label(bl); bad(mask, pos)
        tails.append(tail)
    def emit_tails():
        for t in tails: t()
        tails.clear()
    def last_check(lab):
        A(f's_cmp_eq_u32 s{sStep}, {nsteps-1}'); A(f's_cbranch_scc1 {lab}')
    A(f's_cmp_ge_u32 s{sW}, 4'); A('s_cbranch_scc1 L_vo')

    vPq, vVPw = 22, 23
    vACC = 24
    A(f's_mul_i32 s{sT0}, s{sW}, {QP_PART}'); A(f's_add_u32 s{sT0}, s{sT0}, {L_QP}')
    A(f'v_mul_u32_u24 v{vPq}, {4*QP_ROW}, v4'); A(f'v_lshl_add_u32 v{vPq}, v3, 2, v{vPq}'); A(f'v_add_u32 v{vPq}, s{sT0}, v{vPq}')
    A(f's_lshl_b32 s{sT0}, s{sU}, 10'); A(f's_add_u32 s{sT1}, s{sT0}, {L_VP}')
    A('v_lshrrev_b32 v8, 1, v4'); A('v_lshl_add_u32 v8, v8, 4, v3'); A('v_lshlrev_b32 v8, 5, v8'); A('v_and_b32 v9, 1, v4')
    A(f'v_lshl_add_u32 v{vVPw}, v9, 4, v8'); A(f'v_add_u32 v{vVPw}, s{sT1}, v{vVPw}')
    vK0, vVxo, vVr, vVo, vPc, vAr0, vAr1 = 12, 13, 14, 15, 16, 17, 18
    A(f'v_mov_b32 v{vK0}, v7')
    A(f's_lshl_b32 s{sT0}, s{sH}, 8'); A(f's_lshl_b32 s{sT1}, s{sJ}, 6'); A(f's_add_u32 s{sT0}, s{sT0}, s{sT1}')
    A(f's_lshl_b32 s{sT0}, s{sT0}, 3'); A(f's_add_u32 s{sT0}, s{sT0}, {VMF}')
    A(f'v_lshlrev_b32 v{vVo}, 4, v3'); A(f'v_lshl_add_u32 v{vVo}, v4, 2, v{vVo}'); A(f'v_add_u32 v{vVo}, s{sT0}, v{vVo}')
    A(f'v_lshlrev_b32 v8, 3, v4'); A(f'v_lshl_add_u32 v{vVr}, v3, 5, v8'); A(f'v_add_u32 v{vVr}, {L_VP}, v{vVr}')
    A(f's_lshl_b32 s{sT0}, s{sX}, 14'); A(f's_lshl_b32 s{sT1}, s{sC}, 9'); A(f's_add_u32 s{sT0}, s{sT0}, s{sT1}')
    A(f'v_lshlrev_b32 v{vPc}, 3, v2'); A(f'v_add_u32 v{vPc}, s{sT0}, v{vPc}')
    A(f's_lshl_b32 s{sT0}, s{sH}, 13'); A(f's_lshl_b32 s{sT1}, s{sJ}, 10'); A(f's_add_u32 s{sT1}, s{sT0}, s{sT1}'); A(f'v_add_u32 v{vAr0}, s{sT1}, v7')
    A(f's_lshl_b32 s{sT1}, s{sJ}, 8'); A(f's_add_u32 s{sT1}, s{sT0}, s{sT1}'); A(f's_add_u32 s{sT1}, s{sT1}, 4096')
    A(f'v_lshlrev_b32 v{vAr1}, 2, v2'); A(f'v_add_u32 v{vAr1}, s{sT1}, v{vAr1}')
    def prefetch():
        A(f's_mov_b32 m0, {L_PF}'); A('s_nop 0')
        for q in range(4): A(f'buffer_load_dwordx4 v{vK0}, {WS}, s{sKX} offen offset:{1024*q} {SC} lds')
        A('s_waitcnt vmcnt(0)')
    def kv_wait(sblk):
        A(f's_lshl_b32 s{sT1}, s{sblk}, 2'); A(f's_add_u32 s{sT1}, s{sT1}, {F_KV}'); A(f'v_mov_b32 v{vT}, s{sT1}')
        top = poll_head()
        A(f'buffer_load_dword v{vT+1}, v{vT}, {DBG}, 0 offen sc1'); A('s_waitcnt vmcnt(0)')
        A(f'v_cmp_gt_u32 vcc, 128, v{vT+1}'); A(f's_cbranch_vccnz {top}')
    def rec_signal(sblk):
        A(f's_lshl_b32 s{sT1}, s{sblk}, 2'); A(f's_add_u32 s{sT1}, s{sT1}, {F_REC}'); A(f'v_mov_b32 v{vT}, s{sT1}'); A(f'v_mov_b32 v{vT+1}, 1')
        A('s_mov_b64 exec, 1')
        A(f'buffer_atomic_add v{vT+1}, v{vT}, {DBG}, 0 offen sc1')
        A('s_mov_b64 exec, -1')
    def warmup(part=0):
        A(f's_min_u32 s{sT0}, s{sW}, 2'); A(f's_mul_i32 s{sT0}, s{sT0}, {128*11}'); A(f's_add_u32 s{sT0}, s{sT0}, s{sKX}')
        A(f's_add_u32 s{sT0}, s{sT0}, {4096*warm}')
        for q in range(11): A(f's_buffer_load_dword s{sVX}, {WS}, s{sT0} offset:{128*q + 64*part}')
    vOn = 4
    for i in range(4): A(f'v_mov_b32 v{vOn+i}, -1')
    lab = A.uid('pf0')
    A(f's_cmp_lg_u32 s{sW}, 1'); A(f's_cbranch_scc1 {lab}')
    if flags: kv_wait(sStep)
    prefetch()
    A.label(lab)
    pstamp(5)
    A.label('L_qk_loop')
    for i in range(8): A(f'v_mov_b32 v{vACC+i}, 0')
    A('s_barrier')
    stamp('b5')
    vdelay(dD)
    gather(sD, 2, vACC, 'D', gap)
    A('s_nop 6')
    for T in range(2):
        for q in range(2):
            A(f'ds_write2_b32 v{vPq}, v{vACC+4*T+2*q}, v{vACC+4*T+2*q+1} offset0:{16*T + 2*q*QP_ROW//4} offset1:{16*T + (2*q+1)*QP_ROW//4}')
    for i in range(4): A(f'v_mov_b32 v{vT+i}, 0')
    A('s_waitcnt lgkmcnt(0)')
    stamp('pre1')
    A('s_barrier')
    stamp('b1')
    for i in range(4):
        for sec in range(2):
            w = 64 + i * 16 + 8 * sec
            A(smf(vT, i, f'v[{w}:{w+7}]', sec))
    A('s_nop 7')
    A(f'ds_write_b128 v{vVPw}, v[{vT}:{vT+3}]')
    A('s_waitcnt lgkmcnt(0)')
    stamp('pre3')
    A('s_barrier')
    astamp('a3', 2)
    nv = A.uid('nv')
    A(f's_cmp_lg_u32 s{sW}, 3'); A(f's_cbranch_scc1 {nv}')
    delay(dH)
    for t in range(2):
        for u in range(4):
            A(f'ds_read_b64 v[{vM+8*t+2*u}:{vM+8*t+2*u+1}], v{vVr} offset:{u*1024 + t*512}')
    A('s_waitcnt lgkmcnt(0)')
    for t in range(2):
        b = vM + 8 * t
        A(f'v_pk_add_f32 v[{b}:{b+1}], v[{b}:{b+1}], v[{b+2}:{b+3}]')
        A(f'v_pk_add_f32 v[{b+4}:{b+5}], v[{b+4}:{b+5}], v[{b+6}:{b+7}]')
    for t in range(2):
        b = vM + 8 * t
        A(f'v_pk_add_f32 v[{b}:{b+1}], v[{b}:{b+1}], v[{b+4}:{b+5}]')
    A(f'v_cvt_pk_bf16_f32 v{vT+2}, v{vM}, v{vM+1}'); A(f'v_cvt_pk_bf16_f32 v{vT+3}, v{vM+8}, v{vM+9}')
    def vm_save():
        A(f'buffer_store_dword v{vT+2}, v{vVo}, {WS}, s{sSave} offen {SV}')
        A(f'buffer_store_dword v{vT+3}, v{vVo}, {WS}, s{sSave} offen offset:256 {SV}')
    last_check('L_w3_last')
    A.label(nv)
    last_check('L_rec_done')
    if warm:
        n2 = A.uid('n2')
        A(f's_cmp_eq_u32 s{sW}, 2'); A(f's_cbranch_scc1 {n2}')
        warmup()
        A.label(n2)
    A('s_barrier')
    astamp('aB', 2)
    if warm:
        n2 = A.uid('n2')
        A(f's_cmp_eq_u32 s{sW}, 2'); A(f's_cbranch_scc1 {n2}')
        warmup(1)
        A.label(n2)
    A('s_barrier')
    astamp('a4', 2)
    n1 = A.uid('n1'); n3 = A.uid('n3')
    A(f's_cmp_lg_u32 s{sW}, 1'); A(f's_cbranch_scc1 {n1}')
    delay(dP)
    if not nopf: A(f's_add_u32 s{sKX}, s{sKX}, 4096')
    prefetch()
    if not nopf: A(f's_sub_u32 s{sKX}, s{sKX}, 4096')
    if flags:
        A(f's_add_u32 s{sT0}, s{sStep}, {warm+1}'); A(f's_and_b32 s{sT1}, s{sT0}, 7'); A(f's_cbranch_scc1 {n1}')
        A(f's_cmp_ge_u32 s{sT0}, 64'); A(f's_cbranch_scc1 {n1}')
        A(f's_lshr_b32 s{sT0}, s{sT0}, 3')
        kv_wait(sT0)
    A.label(n1)
    A(f's_cmp_lg_u32 s{sW}, 3'); A(f's_cbranch_scc1 {n3}')
    delay(dP)
    A(f'buffer_store_dwordx2 v[{vOn}:{vOn+1}], v{vPc}, {WS}, s{sD} offen')
    A(f'buffer_store_dwordx4 v[{vOn}:{vOn+3}], v{vAr0}, {WS}, s{sA} offen')
    A(f'buffer_store_dword v{vOn}, v{vAr1}, {WS}, s{sA} offen')
    vm_save()
    if flags:
        A(f's_and_b32 s{sT0}, s{sStep}, 7'); A(f's_cbranch_scc1 {n3}')
        A(f's_lshr_b32 s{sT0}, s{sStep}, 3'); A(f's_cbranch_scc0 {n3}')
        A(f's_sub_u32 s{sT0}, s{sT0}, 1')
        rec_signal(sT0)
    A.label(n3)
    advance()
    A('s_branch L_qk_loop')
    A.label('L_w3_last')
    vm_save()
    A('s_branch L_rec_done')
    emit_tails()

    A.label('L_vo')
    if prio: A(f's_setprio {prio}')
    vRw, vRr, vCp, vDp = 22, 23, 24, 27
    vF = 48
    vAC = 96
    vU = 64
    A(f's_lshl_b32 s{sT0}, s{sU}, 10')
    A(f's_add_u32 s{sT1}, s{sT0}, {L_RED}'); A(f'v_lshlrev_b32 v{vRw}, 2, v2'); A(f'v_add_u32 v{vRw}, s{sT1}, v{vRw}')
    vCi = 19
    inbox(0); A(f'v_add_u32 v{vCi}, s{sT0}, v7')
    for i in range(1, 4):
        inbox(i); A(f'v_add_u32 v{vCp + i - 1}, s{sT0}, v7')
    A('v_and_b32 v14, 4, v3'); A('v_add_u32 v14, v14, v4')
    A('v_lshlrev_b32 v15, 4, v5'); A('v_add_u32 v15, v15, v14')
    A('v_and_b32 v16, 2, v3'); A('v_lshl_add_u32 v15, v16, 2, v15')
    A('v_lshlrev_b32 v15, 4, v15'); A('v_and_b32 v16, 1, v3'); A('v_lshl_add_u32 v15, v16, 3, v15')
    A(f's_lshl_b32 s{sT0}, s{sX}, 14'); A(f's_lshl_b32 s{sT1}, s{sC}, 9'); A(f's_add_u32 s{sT0}, s{sT0}, s{sT1}'); A(f'v_add_u32 v{vDp}, s{sT0}, v15')
    vRb, vOn2 = 29, 100
    A('v_mov_b32 v28, 0'); A('v_mov_b32 v30, 0'); A('v_mov_b32 v31, 0'); A('v_mov_b32 v12, 0')
    A(f'v_lshlrev_b32 v{vRb}, 3, v2'); A(f'v_add_u32 v{vRb}, s{sT0}, v{vRb}')
    for i in range(4): A(f'v_mov_b32 v{vOn2+i}, -1')
    A('v_lshlrev_b32 v14, 11, v14'); A('v_lshl_add_u32 v14, v5, 5, v14'); A('v_and_b32 v16, 3, v3'); A('v_lshl_add_u32 v14, v16, 3, v14')
    A(f's_lshl_b32 s{sT1}, s{sC}, 6'); A(f'v_add_u32 v14, s{sT1}, v14')
    A(f'buffer_load_dwordx2 v[{vU}:{vU+1}], v14, s[{S_M0}:{S_M0+3}], 0 offen')
    vRr0, vPub, vPub2, vKo = 28, 29, 30, 31
    vKX = 100
    vR = 108
    vS = 36
    sMhi, sMm = 60, 62
    vAp0, vAp1, vVr, vVxr, vOp, vIdp = 28, 29, 30, 31, 12, 13
    vB = 100
    vOne = 116
    vP = 124
    sEv, sOd = 60, 62
    l6 = A.uid('s6'); le = A.uid('se')
    A(f's_cmp_eq_u32 s{sW}, 6'); A(f's_cbranch_scc1 {l6}')
    A(f's_cmp_lg_u32 s{sW}, 4'); A(f's_cbranch_scc1 {le}')
    A(f'v_mul_u32_u24 v{vRr0}, {QP_ROW}, v3'); A(f'v_lshl_add_u32 v{vRr0}, v4, 5, v{vRr0}'); A(f'v_add_u32 v{vRr0}, {L_QP}, v{vRr0}')
    A(f's_lshl_b32 s{sT0}, s{sH}, 11'); A(f's_lshl_b32 s{sT1}, s{sJ}, 9'); A(f's_add_u32 s{sT0}, s{sT0}, s{sT1}')
    A(f's_add_u32 s{sT0}, s{sT0}, {KM}')
    A(f'v_lshl_add_u32 v{vKo}, v4, 3, v6'); A(f'v_lshlrev_b32 v{vKo}, 4, v{vKo}'); A(f'v_add_u32 v{vKo}, s{sT0}, v{vKo}')
    A(f's_lshl_b32 s{sT0}, s{sH}, 13'); A(f's_lshl_b32 s{sT1}, s{sJ}, 10'); A(f's_add_u32 s{sT1}, s{sT0}, s{sT1}')
    A(f'v_add_u32 v{vPub}, s{sT1}, v7')
    A(f's_lshl_b32 s{sT1}, s{sJ}, 8'); A(f's_add_u32 s{sT1}, s{sT0}, s{sT1}'); A(f's_add_u32 s{sT1}, s{sT1}, 4096')
    A('v_and_b32 v16, 1, v4'); A(f'v_lshlrev_b32 v{vPub2}, 5, v6'); A(f'v_lshl_add_u32 v{vPub2}, v16, 4, v{vPub2}'); A(f'v_add_u32 v{vPub2}, s{sT1}, v{vPub2}')
    A(f's_mov_b32 s{sMhi}, 0xff00ff00'); A(f's_mov_b32 s{sMhi+1}, 0xff00ff00')
    A(f's_mov_b32 s{sMm}, 0'); A(f's_mov_b32 s{sMm+1}, 0x00ff00ff')
    A(f's_branch {le}')
    A.label(l6)
    A(f's_mov_b32 s{sEv}, 0x0000ffff'); A(f's_mov_b32 s{sEv+1}, 0x0000ffff'); A(f's_mov_b32 s{sOd}, 0xffff0000'); A(f's_mov_b32 s{sOd+1}, 0xffff0000')
    A(f's_lshl_b32 s{sT0}, s{sH}, 13'); A(f'v_add_u32 v{vAp0}, s{sT0}, v7')
    A('v_and_b32 v16, 1, v4'); A('v_lshlrev_b32 v16, 2, v16'); A('v_and_b32 v17, 2, v4'); A('v_add3_u32 v16, v16, v17, v5')
    A(f'v_lshlrev_b32 v16, 2, v16'); A(f'v_lshl_add_u32 v16, v6, 5, v16')
    A(f's_add_u32 s{sT0}, s{sT0}, 4096'); A(f'v_add_u32 v{vAp1}, s{sT0}, v16')
    A(f'v_lshrrev_b32 v16, 1, v4'); A(f'v_lshlrev_b32 v16, 4, v16'); A(f'v_lshl_add_u32 v{vVr}, v3, 5, v16'); A(f'v_add_u32 v{vVr}, {L_VP}, v{vVr}')
    A(f'v_add_u32 v16, v16, v3'); A(f'v_lshlrev_b32 v16, 4, v16'); A(f'v_add_u32 v{vVxr}, {L_PF+2048}, v16')
    A(f'v_lshrrev_b32 v16, 3, v3'); A('v_lshl_add_u32 v16, v16, 4, v18'); A('v_and_b32 v17, 1, v3'); A('v_lshl_add_u32 v16, v17, 3, v16')
    A('v_bfe_u32 v17, v3, 1, 2'); A('v_lshl_add_u32 v16, v16, 2, v17'); A('v_lshlrev_b32 v16, 2, v16')
    A(f's_lshl_b32 s{sT0}, s{sX}, 14'); A(f's_lshl_b32 s{sT1}, s{sC}, 9'); A(f's_add_u32 s{sT0}, s{sT0}, s{sT1}'); A(f'v_add_u32 v{vOp}, s{sT0}, v16')
    A(f'v_or_b32 v16, 0x48, v5'); A(f'v_lshlrev_b32 v16, 8, v16'); A(f'v_and_b32 v17, 0xff, v{vIdx}'); A(f'v_or_b32 v{vIdp}, v16, v17')
    for i in range(16): A(f'v_mov_b32 v{vB+i}, 0')
    for i in range(8): A(f'v_mov_b32 v{vOne+i}, 0x3f803f80')
    A(f'v_mov_b32 v{vP+3}, 0')
    A.label(le)
    A('s_waitcnt vmcnt(0)')
    A(f'v_min_u32 v{vU}, s{sSent}, v{vU}'); A(f'v_min_u32 v{vU+1}, s{sSent}, v{vU+1}')
    n5 = A.uid('n5')
    A(f's_cmp_lg_u32 s{sW}, 5'); A(f's_cbranch_scc1 {n5}')
    A(f'buffer_store_dwordx2 v[{vU}:{vU+1}], v{vDp}, {WS}, s{sD} offen')
    A.label(n5)
    A('s_barrier')
    A.label('L_vo_loop')
    A(f's_cmp_eq_u32 s{sW}, 4'); A('s_cbranch_scc1 L_w4')
    A(f's_cmp_eq_u32 s{sW}, 6'); A('s_cbranch_scc1 L_w6')
    A(f's_xor_b32 s{sT0}, s{sCc}, 4096')
    A(f's_cmp_eq_u32 s{sW}, 5')
    A('s_barrier')
    n7 = A.uid('n7')
    A(f's_cbranch_scc1 {n7}')
    for i in range(1, 4):
        A(f'buffer_store_dwordx4 v[{vOn2}:{vOn2+3}], v{vCi}, {WS}, s{sT0} offen offset:{1024*i} sc1')
    A(f'buffer_store_dwordx2 v[{vOn2}:{vOn2+1}], v{vRb}, {WS}, s{sBo} offen')
    A.label(n7)
    astamp('a1', 5)
    A('s_barrier')
    last_check('L_rec_done')
    A.label('L_vo_z')
    for i in range(4): A(f'v_mov_b32 v{vAC+i}, 0')
    A('s_barrier')
    A.label('L_vo_b')
    stamp('Bpub')
    vdelay(dB)
    gather(sB, 1, vAC, 'B', gap)
    A('s_nop 7')
    A(f'ds_write2st64_b32 v{vRw}, v{vAC}, v{vAC+1} offset0:0 offset1:1')
    A(f'ds_write2st64_b32 v{vRw}, v{vAC+2}, v{vAC+3} offset0:2 offset1:3')
    A('s_waitcnt lgkmcnt(0)')
    stamp('pre4')
    A(f's_cmp_lg_u32 s{sW}, 5')
    A('s_barrier')
    A('s_cbranch_scc1 L_vo_n5')
    stamp('b4')
    for w in range(4): A(f'ds_read_b128 v[{vU+4*w}:{vU+4*w+3}], v7 offset:{L_RED + 1024*w}')
    def add4(d, x, y):
        A(f'v_pk_add_f32 v[{d}:{d+1}], v[{x}:{x+1}], v[{y}:{y+1}]'); A(f'v_pk_add_f32 v[{d+2}:{d+3}], v[{x+2}:{x+3}], v[{y+2}:{y+3}]')
    A('s_waitcnt lgkmcnt(2)'); add4(vU, vU, vU + 4)
    A('s_waitcnt lgkmcnt(1)'); add4(vU, vU, vU + 8)
    A('s_waitcnt lgkmcnt(0)'); add4(vU, vU, vU + 12)
    for i in range(1, 4):
        A(f'buffer_store_dwordx4 v[{vU}:{vU+3}], v{vCp+i-1}, {WS}, s{sCc} offen offset:{1024*i} sc1')
    stamp('Cpub')
    CS = (vU + 4, vU + 16)
    vE = 104
    def c_loads(k):
        for i in range(1, 4):
            b = CS[k] + 4 * (i - 1)
            A(f'buffer_load_dwordx4 v[{b}:{b+3}], v{vCi}, {WS}, s{sCc} offen offset:{1024*i} sc1')
    def c_try(k):
        b = CS[k]
        A.label(f'L_c_wait{k}')
        A('s_waitcnt vmcnt(5)')
        stamp('Carr')
        add4(vE, vU, b)
        A('s_waitcnt vmcnt(3)')
        add4(vE + 4, b + 4, b + 8)
        add4(vE, vE, vE + 4)
        A(f'v_maximum3_f32 v{vE+8}, v{vE}, v{vE+1}, v{vE+2}')
        A(f'v_cmp_u_f32 vcc, v{vE+8}, v{vE+3}')
        A(f'v_cvt_pk_bf16_f32 v{vE}, v{vE}, v{vE+1}'); A(f'v_cvt_pk_bf16_f32 v{vE+1}, v{vE+2}, v{vE+3}')
        A(f'v_min_u32 v{vE}, s{sSent}, v{vE}'); A(f'v_min_u32 v{vE+1}, s{sSent}, v{vE+1}')
        A(f's_cbranch_vccnz L_c_fail{k}')
    delay(dC)
    c_loads(0)
    delay(dC2)
    c_loads(1)
    c_try(0)
    A.label('L_c_ok')
    A(f'buffer_store_dwordx2 v[{vE}:{vE+1}], v{vDp}, {WS}, s{sDo} offen')
    A.label('L_vo_b5')
    A('s_barrier')
    stamp('Dpub')
    astamp('a5', 7)
    if slog:
        lab = A.uid('sl')
        A(f's_cmp_lg_u32 s{sW}, 7'); A(f's_cbranch_scc1 {lab}')
        A(f's_memrealtime s[{sP}:{sP+1}]'); A('s_waitcnt lgkmcnt(0)')
        A(f's_mov_b32 m0, s{sStep}'); A(f'v_writelane_b32 v120, s{sP}, m0')
        A.label(lab)
    advance()
    A('s_waitcnt vmcnt(0)')
    A('s_branch L_vo_loop')
    A.label('L_vo_n5')
    A(f's_cmp_lg_u32 s{sW}, 4'); A('s_cbranch_scc1 L_vo_b5')
    delay(dP)
    A(f's_mov_b64 exec, s[{sMhi}:{sMhi+1}]')
    A(f'buffer_store_dwordx4 v[{vR}:{vR+3}], v{vKo}, {WS}, s{sSave} offen {SV}')
    A('s_mov_b64 exec, -1')
    A('s_branch L_vo_b5')
    for k in range(2):
        b = CS[k]
        A.label(f'L_c_fail{k}')
        A(f's_sub_u32 s{sBud}, s{sBud}, 1'); A(f's_cbranch_scc1 {exit_label}')
        A(f's_sub_u32 s{sFc}, s{sFc}, 1')
        A(f'v_max3_u32 v{vE+8}, v{b}, v{b+1}, v{b+2}')
        for q in range(3, 11, 2): A(f'v_max3_u32 v{vE+8}, v{vE+8}, v{b+q}, v{b+q+1}')
        A(f'v_max_u32 v{vE+8}, v{vE+8}, v{b+11}')
        A(f'v_cmp_eq_u32 vcc, -1, v{vE+8}'); A('s_cbranch_vccz L_c_ok')
        c_loads(k)
        if k == 0:
            c_try(1); A('s_branch L_c_ok')
        else:
            A('s_branch L_c_wait0')
    emit_tails()
    A.label('L_w4')
    A(f'ds_read_b128 v[{vKX}:{vKX+3}], v7 offset:{L_PF}'); A(f'ds_read_b128 v[{vKX+4}:{vKX+7}], v7 offset:{L_PF+1024}')
    A('s_waitcnt lgkmcnt(0)')
    A('s_barrier')
    for w in range(4):
        for hf in range(2):
            A(f'ds_read_b128 v[{vF+8*w+4*hf}:{vF+8*w+4*hf+3}], v{vRr0} offset:{w*QP_PART + hf*16}')
    A('s_waitcnt lgkmcnt(4)')
    for q in range(4): A(f'v_pk_add_f32 v[{vF+2*q}:{vF+2*q+1}], v[{vF+2*q}:{vF+2*q+1}], v[{vF+8+2*q}:{vF+8+2*q+1}]')
    A('s_waitcnt lgkmcnt(2)')
    for q in range(4): A(f'v_pk_add_f32 v[{vF+2*q}:{vF+2*q+1}], v[{vF+2*q}:{vF+2*q+1}], v[{vF+16+2*q}:{vF+16+2*q+1}]')
    A('s_waitcnt lgkmcnt(0)')
    for q in range(4): A(f'v_pk_add_f32 v[{vF+2*q}:{vF+2*q+1}], v[{vF+2*q}:{vF+2*q+1}], v[{vF+24+2*q}:{vF+24+2*q+1}]')
    for q in range(4): A(f'v_cvt_pk_bf16_f32 v{vR+q}, v{vF+2*q}, v{vF+2*q+1}')
    A('s_nop 1')
    A(f'v_mfma_f32_16x16x32_bf16 v[{vS+8}:{vS+11}], v[{vR}:{vR+3}], v[{vR}:{vR+3}], 0')
    A(f'v_mfma_f32_16x16x32_bf16 v[{vS+4}:{vS+7}], v[{vKX+4}:{vKX+7}], v[{vR}:{vR+3}], 0')
    A(f'v_mfma_f32_16x16x32_bf16 v[{vS}:{vS+3}], v[{vKX}:{vKX+3}], v[{vR}:{vR+3}], 0')
    A('s_nop 4')
    A(f's_mov_b64 exec, s[{sMm}:{sMm+1}]')
    A(f'buffer_store_dwordx4 v[{vS+8}:{vS+11}], v{vPub2}, {WS}, s{sA} offen')
    A('s_mov_b64 exec, -1')
    for i in range(4): A(f'v_mov_b32_dpp v{vS+i}, v{vS+4+i} row_ror:8 row_mask:0xf bank_mask:0xc')
    A(f'buffer_store_dwordx4 v[{vS}:{vS+3}], v{vPub}, {WS}, s{sA} offen')
    stamp('Apub')
    A('s_barrier')
    A(f's_cmp_lg_u32 s{sStep}, {nsteps-1}'); A('s_cbranch_scc1 L_vo_z')
    A(f's_mov_b64 exec, s[{sMhi}:{sMhi+1}]')
    A(f'buffer_store_dwordx4 v[{vR}:{vR+3}], v{vKo}, {WS}, s{sSave} offen {SV}')
    A('s_mov_b64 exec, -1')
    A('s_branch L_rec_done')
    A.label('L_w6')
    A(f's_mov_b64 exec, s[{sEv}:{sEv+1}]')
    for q in range(4): A(f'ds_read_b128 v[{vB+4*q}:{vB+4*q+3}], v{vVxr} offset:{512*q}')
    A('s_mov_b64 exec, -1')
    vO = 84
    for i in range(12): A(f'v_mov_b32 v{vO+i}, 0')
    for i in range(4): A(f'v_mov_b32 v{vAC+i}, 0')
    A('s_waitcnt lgkmcnt(0)')
    A('s_barrier')
    A('s_barrier')
    stamp('b3')
    last_check('L_rec_done')
    delay(dA)
    SETS = ((vM, 48), (64, 80))
    def a_loads(k):
        bx, bm = SETS[k]
        for i in range(4):
            A(f'buffer_load_dword v{bm+i}, v{vAp1}, {WS}, s{sA} offen offset:{256*i} sc1')
        for i in range(4):
            A(f'buffer_load_dwordx4 v[{bx+4*i}:{bx+4*i+3}], v{vAp0}, {WS}, s{sA} offen offset:{1024*i} sc1')
    a_loads(0)
    vV = vF + 4
    for t in range(2):
        for u in range(4):
            A(f'ds_read_b128 v[{vV+16*t+4*u}:{vV+16*t+4*u+3}], v{vVr} offset:{u*1024 + t*512}')
    A('s_waitcnt lgkmcnt(0)')
    for t in range(2):
        b = vV + 16 * t
        for q in range(2):
            A(f'v_pk_add_f32 v[{b+2*q}:{b+2*q+1}], v[{b+2*q}:{b+2*q+1}], v[{b+4+2*q}:{b+4+2*q+1}]')
            A(f'v_pk_add_f32 v[{b+8+2*q}:{b+8+2*q+1}], v[{b+8+2*q}:{b+8+2*q+1}], v[{b+12+2*q}:{b+12+2*q+1}]')
        for q in range(2):
            A(f'v_pk_add_f32 v[{b+2*q}:{b+2*q+1}], v[{b+2*q}:{b+2*q+1}], v[{b+8+2*q}:{b+8+2*q+1}]')
    A(f's_mov_b64 exec, s[{sOd}:{sOd+1}]')
    for t in range(2):
        for q in range(2):
            A(f'v_cvt_pk_bf16_f32 v{vB+8*t+4*q}, v{vV+16*t+2*q}, v{vV+16*t+2*q+1}')
    A('s_mov_b64 exec, -1')
    a_loads(1)
    e = 56
    sv = [e, e + 1, e + 2, e + 3, e + 4]
    r, t = vT, vT + 1
    def a_try(k):
        bx, bm = SETS[k]
        A.label(f'L_a_wait{k}')
        A('s_waitcnt vmcnt(10)')
        stamp('Aarr')
        A(f'v_pk_add_f32 v[{e+4}:{e+5}], v[{bm}:{bm+1}], v[{bm+2}:{bm+3}]')
        A(f'v_pk_add_f32 v[{e}:{e+1}], v[{bx}:{bx+1}], v[{bx+4}:{bx+5}]')
        A(f'v_pk_add_f32 v[{e+2}:{e+3}], v[{bx+2}:{bx+3}], v[{bx+6}:{bx+7}]')
        A(f'v_add_f32 v{e+4}, v{e+4}, v{e+5}')
        A('s_waitcnt vmcnt(9)')
        A(f'v_pk_add_f32 v[{e}:{e+1}], v[{e}:{e+1}], v[{bx+8}:{bx+9}]')
        A(f'v_pk_add_f32 v[{e+2}:{e+3}], v[{e+2}:{e+3}], v[{bx+10}:{bx+11}]')
        A('s_waitcnt vmcnt(8)')
        A(f'v_pk_add_f32 v[{e}:{e+1}], v[{e}:{e+1}], v[{bx+12}:{bx+13}]')
        A(f'v_pk_add_f32 v[{e+2}:{e+3}], v[{e+2}:{e+3}], v[{bx+14}:{bx+15}]')
        A(f'v_maximum3_f32 v{vT}, v{sv[0]}, v{sv[1]}, v{sv[4]}'); A(f'v_maximum3_f32 v{vT}, v{vT}, v{sv[2]}, v{sv[3]}')
        A(f'v_cmp_u_f32 vcc, v{vT}, v{vT}')
        A('s_nop 0')
        A(f'v_max_f32_dpp v{r}, v{r}, v{r} row_ror:8 row_mask:0xf bank_mask:0xf')
        A(f'v_mov_b32 v{t}, v{r}'); A('s_nop 1')
        A(f'v_permlane16_swap_b32 v{r}, v{t}')
        A(f's_cbranch_vccnz L_a_fail{k}')
    a_try(0)
    A.label('L_a_ok')
    A(f'v_max_f32 v{r}, v{r}, v{t}')
    A(f'v_mov_b32 v{t}, v{r}'); A('s_nop 1')
    A(f'v_permlane32_swap_b32 v{r}, v{t}'); A(f'v_max_f32 v{r}, v{r}, v{t}')
    A(f'v_mul_f32 v{vT}, s{sScale}, v{vT}')
    for x in sv: A(f'v_fma_f32 v{x}, v{x}, s{sScale}, -v{vT}')
    for x in sv: A(f'v_exp_f32 v{x}, v{x}')
    A(f'v_cvt_pk_bf16_f32 v{vP}, v{sv[0]}, v{sv[1]}'); A(f'v_cvt_pk_bf16_f32 v{vP+1}, v{sv[2]}, v{sv[3]}')
    A(f'v_cvt_pk_bf16_f32 v{vP+2}, v{sv[4]}, 0')
    A('s_nop 1')
    A(f'v_smfmac_f32_16x16x64_bf16 v[{vO}:{vO+3}], v[{vP}:{vP+3}], v[{vOne}:{vOne+7}], v{vIdp}')
    for t in range(2): A(f'v_smfmac_f32_16x16x64_bf16 v[{vO+4+4*t}:{vO+7+4*t}], v[{vP}:{vP+3}], v[{vB+8*t}:{vB+8*t+7}], v{vIdp}')
    A('s_nop 5')
    for t in range(3):
        b = vO + 4 * t
        A(f'v_permlane32_swap_b32 v{b}, v{b+1}'); A(f'v_permlane32_swap_b32 v{b+2}, v{b+3}')
        A(f'v_add_f32 v{b}, v{b}, v{b+1}'); A(f'v_add_f32 v{b+2}, v{b+2}, v{b+3}')
        if t == 0:
            A(f'v_rcp_f32 v{b}, v{b}'); A(f'v_rcp_f32 v{b+2}, v{b+2}')
        else:
            A(f'v_mul_f32 v{b}, v{b}, v{vO}'); A(f'v_mul_f32 v{b+2}, v{b+2}, v{vO+2}')
    A(f'v_cvt_pk_bf16_f32 v{vT+2}, v{vO+4}, v{vO+8}'); A(f'v_cvt_pk_bf16_f32 v{vT+3}, v{vO+6}, v{vO+10}')
    A(f'v_min_u32 v{vT+2}, s{sSent}, v{vT+2}')
    A(f'buffer_store_dword v{vT+2}, v{vOp}, {WS}, s{sB} offen')
    A(f'v_min_u32 v{vT+3}, s{sSent}, v{vT+3}')
    A(f'buffer_store_dword v{vT+3}, v{vOp}, {WS}, s{sB} offen offset:32')
    A('s_barrier')
    A('s_branch L_vo_b')
    for k in range(2):
        bx, bm = SETS[k]
        A.label(f'L_a_fail{k}')
        A(f's_sub_u32 s{sBud}, s{sBud}, 1'); A(f's_cbranch_scc1 {exit_label}')
        A(f's_and_b32 s{sT0}, s{sBud}, 7'); A(f's_cbranch_scc1 L_a_re{k}')
        regs = list(range(bx, bx + 16)) + list(range(bm, bm + 4))
        A(f'v_max3_u32 v{vT+2}, v{regs[0]}, v{regs[1]}, v{regs[2]}')
        for q in range(3, 19, 2): A(f'v_max3_u32 v{vT+2}, v{vT+2}, v{regs[q]}, v{regs[q+1]}')
        A(f'v_max_u32 v{vT+2}, v{vT+2}, v{regs[19]}')
        A(f'v_cmp_eq_u32 vcc, -1, v{vT+2}'); A('s_cbranch_vccz L_a_ok')
        A.label(f'L_a_re{k}')
        a_loads(k)
        if k == 0:
            a_try(1)
            A('s_branch L_a_ok')
        else:
            A('s_branch L_a_wait0')

    A.label('L_rec_done')
    A('s_setprio 0')
    if flags:
        A('s_waitcnt vmcnt(0) lgkmcnt(0)'); A('s_barrier')
        lab = A.uid('fs')
        A(f's_cmp_lg_u32 s{sW}, 0'); A(f's_cbranch_scc1 {lab}')
        A(f's_mov_b32 s{sT0}, 7'); rec_signal(sT0)
        A.label(lab)
    if slog:
        lab = A.uid('sd')
        A(f's_cmp_lg_u32 s{sW}, 7'); A(f's_cbranch_scc1 {lab}')
        A(f's_lshl_b32 s{sT0}, s{sX}, 5'); A(f's_add_u32 s{sT0}, s{sT0}, s{sC}'); A(f's_lshl_b32 s{sT0}, s{sT0}, 8'); A(f's_add_u32 s{sT0}, s{sT0}, {PROF + 3*MB}')
        A('v_lshlrev_b32 v1, 2, v2'); A(f'buffer_store_dword v120, v1, {WS}, s{sT0} offen')
        A.label(lab)
    if pst:
        A('s_memrealtime s[86:87]'); A('s_waitcnt lgkmcnt(0)')
        A(f's_lshl_b32 s{sT0}, s{sX}, 5'); A(f's_add_u32 s{sT0}, s{sT0}, s{sC}'); A(f's_lshl_b32 s{sT0}, s{sT0}, 3'); A(f's_add_u32 s{sT0}, s{sT0}, s{sW}')
        A(f's_lshl_b32 s{sT0}, s{sT0}, 7'); A(f's_add_u32 s{sT0}, s{sT0}, {PROF + MB}')
        A('v_mov_b32 v1, 0'); A('s_mov_b64 exec, 1')
        for i in range(7):
            A(f'v_mov_b32 v2, s{86+2*i}'); A(f'buffer_store_dword v2, v1, {WS}, s{sT0} offen offset:{4*i}')
        A(f'v_mov_b32 v2, s{sPar}'); A(f'buffer_store_dword v2, v1, {WS}, s{sT0} offen offset:28')
        A(f'v_mov_b32 v2, s{sVote}'); A(f'buffer_store_dword v2, v1, {WS}, s{sT0} offen offset:32')
        A('s_mov_b64 exec, -1')
    if prof is not None:
        A(f's_memtime s[{sP}:{sP+1}]'); A('s_waitcnt lgkmcnt(0)')
        A(f's_lshl_b32 s{sT0}, s{sX}, 5'); A(f's_add_u32 s{sT0}, s{sT0}, s{sC}'); A(f's_lshl_b32 s{sT0}, s{sT0}, 3'); A(f's_add_u32 s{sT0}, s{sT0}, s{sW}')
        A(f's_lshl_b32 s{sT0}, s{sT0}, 7'); A(f's_add_u32 s{sT0}, s{sT0}, {PROF}')
        A('v_mov_b32 v1, 0'); A('s_mov_b64 exec, 1')
        for i in range(len(stamps)):
            A(f'v_mov_b32 v2, s{sPF+2*i}'); A(f'buffer_store_dword v2, v1, {WS}, s{sT0} offen offset:{4*i}')
        A(f'v_mov_b32 v2, s{sP}'); A(f'buffer_store_dword v2, v1, {WS}, s{sT0} offen offset:120')
        A(f'v_mov_b32 v2, s{sBud}'); A(f'buffer_store_dword v2, v1, {WS}, s{sT0} offen offset:124')
        A(f'v_mov_b32 v2, s58'); A(f'buffer_store_dword v2, v1, {WS}, s{sT0} offen offset:116')
        A('s_mov_b64 exec, -1')
    return stamps

import struct
def float_hex(f):
    return '0x%08x' % struct.unpack('<I', struct.pack('<f', f))[0]

def gen_ticket(A, pst=False):
    if pst: A('s_memrealtime s[88:89]')
    A(f's_load_dwordx2 s[4:5], s[0:1], {KA["ws"]}')
    A(f's_load_dwordx2 s[6:7], s[0:1], {KA["dbg"]}')
    A(f's_getreg_b32 s{sX}, hwreg(HW_REG_XCC_ID)')
    A(f's_and_b32 s{sX}, s{sX}, 7')
    A('v_lshrrev_b32 v1, 6, v0')
    A(f'v_mov_b32 v3, {L_TICKET}')
    A(f'v_readfirstlane_b32 s{sW}, v1')
    A('s_waitcnt lgkmcnt(0)')
    srd(A, S_WS, 4, WS_BYTES); srd(A, S_DBG, 6, 256)
    A(f's_cmp_lg_u32 s{sW}, 0'); A('s_cbranch_scc1 L_noticket')
    A('s_mov_b64 exec, 1')
    A(f's_lshl_b32 s3, s{sX}, 2')
    A('v_mov_b32 v1, s3'); A('v_mov_b32 v2, 1')
    A(f'buffer_atomic_add v2, v1, s[{S_DBG}:{S_DBG+3}], 0 offen sc0 sc1')
    A(f's_cmp_ge_u32 s{sX}, 4'); A('s_cbranch_scc1 L_nocal')
    A('s_and_b32 s3, s2, 127'); A('s_lshl_b32 s3, s3, 14'); A(f's_bfe_u32 s{sT0}, s2, 0x20007'); A(f's_lshl_b32 s{sT0}, s{sT0}, 8')
    A(f's_add_u32 s3, s3, s{sT0}'); A(f's_add_u32 s3, s3, {CBUF}'); A(f's_add_u32 s{sT0}, s3, 8192')
    A('v_mov_b32 v4, 0'); A('v_mov_b32 v5, -1'); A(f'v_mov_b32 v6, {ABUF}')
    W = f's[{S_WS}:{S_WS+3}]'
    A(f'buffer_store_dword v5, v4, {W}, s3 offen sc1'); A(f'buffer_store_dword v5, v4, {W}, s{sT0} offen sc1')
    A(f'buffer_load_dword v7, v6, {W}, 0 offen')
    A('s_waitcnt vmcnt(0)')
    A('s_memtime s[48:49]'); A('s_waitcnt lgkmcnt(0)')
    A(f'buffer_store_dword v5, v4, {W}, s3 offen sc1'); A('s_waitcnt vmcnt(0)')
    A('s_memtime s[50:51]'); A('s_waitcnt lgkmcnt(0)')
    A(f'buffer_store_dword v5, v4, {W}, s{sT0} offen sc1'); A('s_waitcnt vmcnt(0)')
    A('s_memtime s[52:53]'); A('s_waitcnt lgkmcnt(0)')
    A('s_sub_u32 s48, s50, s48'); A('s_sub_u32 s50, s52, s50')
    A('s_cmp_gt_u32 s48, s50'); A(f's_cselect_b32 s{sVote}, 0x10001, 1')
    A.label('L_nocal')
    A('s_waitcnt vmcnt(0)')
    A('ds_write_b32 v3, v2')
    A('s_waitcnt lgkmcnt(0)')
    A('s_mov_b64 exec, -1')
    A.label('L_noticket')
    A('s_barrier')
    A('ds_read_b32 v2, v3')
    A('s_waitcnt lgkmcnt(0)')
    A(f'v_readfirstlane_b32 s{sC}, v2')
    A('s_nop 3')

def gen_standalone(bg=0, **kw):
    A = Asm()
    A.raw(f'; @launch grid=(256,1,1) block=(512,1,1) lds={REC_LDS}')
    A.raw('.amdgcn_target "amdgcn-amd-amdhsa--gfx950"')
    kernel_begin(A, 'rec_kernel')
    gen_ticket(A, kw.get('pst'))
    A(f's_cmp_ge_u32 s{sC}, 32'); A('s_cbranch_scc1 L_end')
    A(f's_cmp_ge_u32 s{sX}, 4'); A('s_cbranch_scc1 L_bg')
    stamps = gen_rec(A, **kw)
    A('s_branch L_end')
    A.label('L_bg')
    if bg:
        import gemm_gen as gg
        A(f's_load_dwordx2 s[82:83], s[0:1], {KA["B_x"]}'); A(f's_load_dwordx2 s[84:85], s[0:1], {KA["B_Wq"]}')
        G = gg.Gemm(A); G.common(); A('s_waitcnt lgkmcnt(0)')
        srd(A, gg.gA, 82, 2048 * 2048); srd(A, gg.gB, 84, 8 * MB)
        G.setup(2048, 8192, True)
        A(f's_and_b32 s{gg.sRow}, s{sC}, 7'); A(f's_lshl_b32 s{gg.sRow}, s{gg.sRow}, 8')
        A(f's_lshr_b32 s3, s{sC}, 3'); A(f's_and_b32 s{gg.sCol}, s{sX}, 3'); A(f's_lshl_b32 s{gg.sCol}, s{gg.sCol}, 2'); A(f's_add_u32 s{gg.sCol}, s{gg.sCol}, s3'); A(f's_lshl_b32 s{gg.sCol}, s{gg.sCol}, 8')
        A(f's_mov_b32 s43, {bg}')
        A.label('L_bgl')
        A(f's_lshl_b32 s{gg.sAo}, s{gg.sRow}, 11'); A(f's_lshl_b32 s{gg.sBo_}, s{gg.sCol}, 1')
        G.mainloop(16)
        gg.epi_frag(G, 'Q')
        A('s_barrier')
        A(f's_add_u32 s{gg.sCol}, s{gg.sCol}, 1280'); A(f's_and_b32 s{gg.sCol}, s{gg.sCol}, 4095')
        A('s_sub_u32 s43, s43, 1'); A('s_cmp_lg_u32 s43, 0'); A('s_cbranch_scc1 L_bgl')
    A.label('L_end')
    A('s_endpgm')
    kernel_desc(A, 'rec_kernel', vgpr=256, sgpr=100, accum=256)
    return A.text(), stamps
if __name__ == '__main__':
    t, s = gen_standalone(prof=20)
    open('rec.s', 'w').write(t); print(s)
```

```python
import sys
from asmlib import *
from layout import *
import rec_gen
from rec_gen import sX, sC, S_DBG, L_TICKET
from gemm_gen import *
from attn_gen import *
NAME = 'concat_heads__linear_attn_block__memory_aug_recurrent_mem_tr__prompt'
LDS = 163840
PT = 82
PN = ['B_x', 'B_Wq', 'B_Wk', 'B_Wv', 'B_Wo', 'A_x', 'A_wqkv', 'A_wo', 'out']
def P(n): return PT + 2 * PN.index(n)
DBG = f's[{S_DBG}:{S_DBG+3}]'
sXq, sEnt, sBudW, sTab, sLog, sIdx = 43, 49, 30, 50, 52, 37
TNAMES = ['K0', 'V0', 'K1', 'V1', 'K', 'V', 'Q', 'AKV', 'AQ', 'RED', 'T3', 'T4', 'T7']
T = {n: i for i, n in enumerate(TNAMES)}

def schedule(nblk_in):
    L = []
    for c in range(32): L.append(('V0' if (c >> 1) >> 3 else 'K0', (c & 1) * 4, ((c >> 1) & 7) * 4))
    for c in range(32): L.append(('V1' if (c >> 2) >> 2 else 'K1', 8 + (c & 3) * 4, ((c >> 2) & 3) * 8))
    for c in range(32): L.append(('V' if (c >> 2) >> 2 else 'K', 24 + (c & 3) * 8, ((c >> 2) & 3) * 8))
    for cb in range(8): L.append(('V' if cb >> 2 else 'K', 56, (cb & 3) * 8))
    Qs = [('Q', r * 8, cb * 8) for r in range(8) for cb in range(4)]
    t3 = lambda r: [('T3', r * 8 + s, 0) for s in range(8)]
    t4 = lambda r: [('T4', r * 8 + h * 4, cb * 4) for h in range(2) for cb in range(2)]
    L += Qs[:24]
    L += t3(0) + t3(1)
    L += [('AKV', r * 8, cb * 4) for r in range(8) for cb in range(2)]
    L += [('AQ', r * 8, 0) for r in range(8)]
    L += t3(2) + t4(0) + t4(1)
    L += [('RED', 0, 0), ('RED', 0, 1)]
    L += t3(3) + t3(4)
    L += Qs[24:]
    L += t4(2) + t4(3)
    L += [('T7', r * 8, 0) for r in range(8)]
    L += t4(4)
    for r in range(5, nblk_in): L += t3(r) + t4(r)
    return L

def wait_flag(A, soff, target):
    lab = A.uid('wf'); top = A.uid('wt')
    A(f's_cmp_lg_u32 s{sW_}, 0'); A(f's_cbranch_scc1 {lab}')
    A(f'v_mov_b32 v3, s{soff}')
    A.label(top)
    A(f'buffer_load_dword v4, v3, {DBG}, 0 offen sc1')
    A(f's_sub_u32 s{sBudW}, s{sBudW}, 1'); A('s_cbranch_scc1 L_end')
    A('s_waitcnt vmcnt(0)')
    A(f'v_cmp_le_u32 vcc, {target}, v4'); A(f's_cbranch_vccnz {lab}')
    A('s_sleep 8')
    A(f's_branch {top}')
    A.label(lab)
    A('s_barrier')
def flag_off(A, base, sidx, shift=0):
    A(f's_lshr_b32 s{sT2}, s{sidx}, {shift}'); A(f's_lshl_b32 s{sT2}, s{sT2}, 2'); A(f's_add_u32 s{sT2}, s{sT2}, {base}')

def k_main(A, nblk_in=6, tlog=False, join=False, warmup=True, t4buf=4, **kw):
    tasks = schedule(nblk_in)
    kernel_begin(A, 'main_kernel')
    for i, n in enumerate(PN): pass
    rec_gen.gen_ticket(A, tlog)
    A(f's_cmp_ge_u32 s{sX}, 4'); A('s_cbranch_scc1 W_start')
    A(f's_cmp_ge_u32 s{sC}, 32'); A('s_cbranch_scc1 L_end')
    rec_gen.gen_rec(A, flags=True, pst=tlog, **kw)
    if not join: A('s_branch L_end')
    else: A(f's_mov_b32 s{sC}, 32')
    A.label('W_start')
    for i, n in enumerate(PN): A(f's_load_dwordx2 s[{PT+2*i}:{PT+2*i+1}], s[0:1], {KA[n]}')
    A(f's_getpc_b64 s[{sTab}:{sTab+1}]')
    A.label('W_pc')
    A(f's_add_u32 s{sTab}, s{sTab}, W_table-W_pc'); A(f's_addc_u32 s{sTab+1}, s{sTab+1}, 0')
    A('v_mbcnt_lo_u32_b32 v2, -1, 0'); A('v_mbcnt_hi_u32_b32 v2, -1, v2')
    A(f's_and_b32 s{sXq}, s{sX}, 3'); A(f's_mov_b32 s{sBudW}, 0x100000'); A('s_mov_b32 s53, 256')
    if tlog:
        A(f's_mul_i32 s{sLog}, s{sX}, 40'); A(f's_min_u32 s3, s{sC}, 39'); A(f's_add_u32 s{sLog}, s{sLog}, s3'); A(f's_lshl_b32 s{sLog}, s{sLog}, 8'); A(f's_add_u32 s{sLog}, s{sLog}, {PROF + 2*MB}')
    A('s_waitcnt lgkmcnt(0)')
    srd(A, gC, P('out'), 2048 * 4096)
    A(f's_mov_b32 s{sEnt}, s{sC}')
    A(f's_cmp_lt_u32 s{sC}, 32'); A('s_cbranch_scc1 W_have')
    A.label('W_next')
    lab = A.uid('nt')
    A(f'v_mov_b32 v3, {L_TICKET}')
    A(f's_cmp_lg_u32 s{sW_}, 0'); A(f's_cbranch_scc1 {lab}')
    A(f's_lshl_b32 s3, s{sXq}, 2'); A(f's_add_u32 s3, s3, {F_QUEUE}')
    A('v_mov_b32 v4, s3'); A('v_mov_b32 v5, 1'); A('s_mov_b64 exec, 1')
    A(f'buffer_atomic_add v5, v4, {DBG}, 0 offen sc0 sc1'); A('s_waitcnt vmcnt(0)')
    A('ds_write_b32 v3, v5'); A('s_waitcnt lgkmcnt(0)'); A('s_mov_b64 exec, -1')
    A.label(lab)
    A('s_barrier')
    A('ds_read_b32 v5, v3'); A('s_waitcnt lgkmcnt(0)'); A(f'v_readfirstlane_b32 s{sEnt}, v5'); A('s_nop 3')
    A(f's_add_u32 s{sEnt}, s{sEnt}, 32')
    A.label('W_have')
    A('s_sub_u32 s53, s53, 1'); A('s_cbranch_scc1 L_end')
    A(f's_cmp_ge_u32 s{sEnt}, {len(tasks)}'); A('s_cbranch_scc1 L_end')
    A(f's_mov_b32 s{sIdx}, s{sEnt}')
    A(f's_lshl_b32 s{sEnt}, s{sEnt}, 2')
    A(f's_load_dword s{sEnt}, s[{sTab}:{sTab+1}], s{sEnt}')
    if tlog: A('s_memrealtime s[54:55]')
    A('s_waitcnt lgkmcnt(0)')
    if tlog: A('s_mov_b32 s56, s54')
    A(f's_bfe_u32 s{sRow}, s{sEnt}, 0x80008'); A(f's_lshl_b32 s{sRow}, s{sRow}, 5')
    A(f's_bfe_u32 s{sCol}, s{sEnt}, 0x80010')
    A(f's_and_b32 s3, s{sEnt}, 255')
    for n, i in T.items():
        A(f's_cmp_eq_u32 s3, {i}'); A(f's_cbranch_scc1 J_{n}')
    A('s_branch L_end')
    for n in T:
        A.label(f'J_{n}'); A(f's_branch X_{n}')
    def waited():
        if tlog: A('s_memrealtime s[56:57]'); A('s_waitcnt lgkmcnt(0)')
    def finish(add=1):
        A('s_waitcnt vmcnt(0)'); A('s_barrier')
        lab = A.uid('sg')
        A(f's_cmp_lg_u32 s{sW_}, 1'); A(f's_cbranch_scc1 {lab}')
        if add:
            A(f'v_mov_b32 v4, s{sT2}'); A(f'v_mov_b32 v5, {add}'); A('s_mov_b64 exec, 1')
            A(f'buffer_atomic_add v5, v4, {DBG}, 0 offen sc1')
        if tlog:
            A('s_mov_b64 exec, 1')
            A('s_memrealtime s[58:59]'); A('s_waitcnt lgkmcnt(0)')
            A(f'v_mov_b32 v8, s{sEnt}'); A('v_mov_b32 v9, s54'); A('v_mov_b32 v10, s58'); A('v_mov_b32 v11, s56'); A('v_mov_b32 v4, 0')
            A(f'buffer_store_dwordx4 v[8:11], v4, {WSR}, s{sLog} offen')
        A('s_mov_b64 exec, -1')
        A.label(lab)
        if tlog: A(f's_add_u32 s{sLog}, s{sLog}, 16')
        A('s_branch W_next')
    shapes = {'0': dict(MI=2, NI=1, NBUF=3), '1': dict(MI=2, NI=2, NBUF=3), '': dict()}
    def colabs(mul):
        A(f's_lshl_b32 s{sCol}, s{sCol}, 5'); A(f's_mul_i32 s3, s{sXq}, {mul}'); A(f's_add_u32 s{sCol}, s{sCol}, s3')
    for n in ('K0', 'V0', 'K1', 'V1', 'K', 'V', 'Q'):
        A.label(f'X_{n}')
        G = Gemm(A, **shapes[n[1:]])
        srd(A, gA, P('B_x'), 2048 * 2048); srd(A, gB, P({'K': 'B_Wk', 'V': 'B_Wv', 'Q': 'B_Wq'}[n[0]]), 8 * MB)
        colabs(1024)
        G.setup(2048, 8192, n[0] != 'V')
        A(f's_lshl_b32 s{sAo}, s{sRow}, 11'); A(f's_lshl_b32 s{sBo_}, s{sCol}, 1')
        G.mainloop(16)
        if warmup and n[1:] in ('0', '1'):
            A(f's_lshl_b32 s{sT0}, s{sXq}, 5'); A(f's_and_b32 s{sT1}, s{sIdx}, 31'); A(f's_add_u32 s{sT0}, s{sT0}, s{sT1}'); A(f's_lshl_b32 s{sT0}, s{sT0}, 3'); A(f's_add_u32 s{sT0}, s{sT0}, s{sW_}')
            A(f's_lshl_b32 s{sT0}, s{sT0}, 12'); A(f'v_lshlrev_b32 v22, 6, v{vLane}')
            if n[1:] == '0':
                A(f'buffer_load_dword v23, v22, s[{gA}:{gA+3}], s{sT0} offen')
            else:
                srd(A, gA, P('A_x'), 2048 * 2048); srd(A, gB, P('A_wqkv'), 1024 * 6144)
                A(f'buffer_load_dword v23, v22, s[{gA}:{gA+3}], s{sT0} offen')
                A(f'buffer_load_dword v24, v22, s[{gB}:{gB+3}], s{sT0} offen')
                A(f's_add_u32 s{sT1}, s{sT0}, {4*MB}')
                A(f'buffer_load_dword v25, v22, s[{gB}:{gB+3}], s{sT1} offen')
                srd(A, gA, P('A_wo'), 2 * MB)
                A(f's_xor_b32 s{sT1}, s{sT0}, {2*MB}')
                A(f'buffer_load_dword v26, v22, s[{gA}:{gA+3}], s{sT1} offen')
        epi_frag(G, n[0], 'sc1')
        flag_off(A, F_Q if n == 'Q' else F_KV, sRow, 8)
        finish({'0': 1, '1': 2, '': 4}[n[1:]])
    A.label('X_AKV')
    G = Gemm(A)
    srd(A, gA, P('A_x'), 2048 * 2048); srd(A, gB, P('A_wqkv'), 1024 * 6144)
    A(f's_lshl_b32 s3, s{sXq}, 3'); A(f's_add_u32 s{sCol}, s{sCol}, s3')
    G.setup(2048, 6144, False, colmap=akv_colmap)
    A(f's_lshl_b32 s{sAo}, s{sRow}, 11'); A(f's_lshl_b32 s{sBo_}, s{sCol}, 6')
    G.mainloop(16)
    epi_akv(G, 'sc1')
    flag_off(A, F_AKV, sXq); finish()
    A.label('X_AQ')
    G = Gemm(A)
    srd(A, gA, P('A_x'), 2048 * 2048); srd(A, gB, P('A_wqkv'), 1024 * 6144)
    colabs(256)
    G.setup(2048, 6144, True, perm=False)
    A(f's_lshl_b32 s{sAo}, s{sRow}, 11'); A(f's_lshl_b32 s{sBo_}, s{sCol}, 1')
    G.mainloop(16)
    flag_off(A, F_KVB, sXq); wait_flag(A, sT2, 2)
    epi_aq(G, 'sc1', 'sc1')
    A(f's_mov_b32 s{sT2}, {F_AQ}'); finish()
    A.label('X_RED')
    flag_off(A, F_AKV, sXq); wait_flag(A, sT2, 16); waited()
    A(f's_lshl_b32 s{sRow}, s{sXq}, 1'); A(f's_add_u32 s{sRow}, s{sRow}, s{sCol}'); A(f's_lshl_b32 s{sRow}, s{sRow}, 3'); A(f's_add_u32 s{sRow}, s{sRow}, s{sW_}')
    kv_reduce(A, sRow, 'sc1', 'sc1')
    flag_off(A, F_KVB, sXq); finish()
    A.label('X_T3')
    attn_setup(A)
    flag_off(A, F_Q, sRow, 8); wait_flag(A, sT2, 64)
    flag_off(A, F_REC, sRow, 8); wait_flag(A, sT2, 128); waited()
    A(f's_lshr_b32 s{sWM}, s{sRow}, 5'); A(f's_lshl_b32 s{sWN}, s{sXq}, 3'); A(f's_add_u32 s{sWN}, s{sWN}, s{sW_}')
    attn_unit(A, sWM, sWN, 'sc1', 'sc1')
    flag_off(A, F_T3, sRow, 8); finish()
    A.label('X_T4')
    G = Gemm(A, MI=2, NI=1, NBUF=t4buf, ldflagA='sc1')
    srd(A, gA, 4, WS_BYTES); srd(A, gB, P('B_Wo'), 8 * MB)
    colabs(256)
    G.setup(131072, 2048, True, rowmap=True, amode='t16')
    A(f's_lshl_b32 s{sAo}, s{sRow}, 13'); A(f's_add_u32 s{sAo}, s{sAo}, {OB}'); A(f's_lshl_b32 s{sBo_}, s{sCol}, 1')
    flag_off(A, F_T3, sRow, 8); wait_flag(A, sT2, 32); waited()
    G.mainloop(64)
    epi_rows(G, f's[{gC}:{gC+3}]', 4096, 2048)
    finish(0)
    A.label('X_T7')
    G = Gemm(A, ldflagA='sc1')
    srd(A, gA, 4, WS_BYTES); srd(A, gB, P('A_wo'), 2 * MB)
    colabs(256)
    G.setup(65536, 2048, True, amode='t32')
    A(f's_lshl_b32 s{sAo}, s{sRow}, 11'); A(f's_add_u32 s{sAo}, s{sAo}, {OA}'); A(f's_lshl_b32 s{sBo_}, s{sCol}, 1')
    A(f's_mov_b32 s{sT2}, {F_AQ}'); wait_flag(A, sT2, 32); waited()
    G.mainloop(16)
    epi_rows(G, f's[{gC}:{gC+3}]', 4096, 0)
    finish(0)
    A.label('L_end'); A('s_endpgm')
    A.raw('.p2align 2')
    A.raw('.type W_table,@object')
    A.label('W_table')
    for n, r, c in tasks: A.raw(f'.long {T[n] | r << 8 | c << 16:#x}')

def k_attn(A, blk0):
    n = (8 - blk0) * 32
    kernel_begin(A, 'attn_kernel')
    A(f's_cmp_ge_u32 s2, {n}'); A('s_cbranch_scc1 T_end')
    A(f's_load_dwordx2 s[4:5], s[0:1], {KA["ws"]}')
    Gemm(A).common()
    A('s_waitcnt lgkmcnt(0)')
    srd(A, 8, 4, WS_BYTES)
    attn_setup(A)
    A('s_lshr_b32 s43, s2, 2'); A(f's_add_u32 s43, s43, {blk0*8}'); A('s_and_b32 s44, s2, 3'); A('s_lshl_b32 s44, s44, 3'); A(f's_add_u32 s44, s44, s{sW_}')
    attn_unit(A, 43, 44)
    A.label('T_end'); A('s_endpgm')
    return n
def k_out(A, blk0):
    n = (8 - blk0) * 4 * 8
    kernel_begin(A, 'out_kernel')
    A(f's_cmp_ge_u32 s2, {n}'); A('s_cbranch_scc1 O_end')
    A(f's_load_dwordx2 s[4:5], s[0:1], {KA["ws"]}'); A(f's_load_dwordx2 s[82:83], s[0:1], {KA["B_Wo"]}'); A(f's_load_dwordx2 s[84:85], s[0:1], {KA["out"]}')
    G = Gemm(A, MI=1, NI=1, NBUF=4); G.common()
    A('s_waitcnt lgkmcnt(0)')
    srd(A, gA, 4, WS_BYTES); srd(A, gC, 84, 2048 * 4096); srd(A, gB, 82, 8 * MB)
    A(f's_and_b32 s{sCol}, s2, 7'); A(f's_lshl_b32 s{sCol}, s{sCol}, 7'); A(f's_lshr_b32 s{sRow}, s2, 3'); A(f's_lshl_b32 s{sRow}, s{sRow}, 6'); A(f's_add_u32 s{sRow}, s{sRow}, {blk0*256}')
    G.setup(131072, 2048, True, rowmap=True, amode='t16')
    A(f's_lshl_b32 s{sAo}, s{sRow}, 13'); A(f's_add_u32 s{sAo}, s{sAo}, {OB}'); A(f's_lshl_b32 s{sBo_}, s{sCol}, 1')
    G.mainloop(64)
    epi_rows(G, f's[{gC}:{gC+3}]', 4096, 2048)
    A.label('O_end'); A('s_endpgm')
    return n

def build_text(nblk_in=6, **kw):
    B = Asm()
    k_main(B, nblk_in=nblk_in, **kw)
    ks = [('main_kernel', 256, LDS)]
    if nblk_in < 8:
        ks.append(('attn_kernel', k_attn(B, nblk_in), 0)); ks.append(('out_kernel', k_out(B, nblk_in), LDS))
    A = Asm()
    for n, g, l in ks: A.raw(f'; @launch kernel={n} grid=({g},1,1) block=(512,1,1) lds={l}')
    A.raw('.amdgcn_target "amdgcn-amd-amdhsa--gfx950"')
    A.lines += B.lines
    for n, g, l in ks: kernel_desc(A, n, vgpr=256, sgpr=102, accum=256)
    return A.text()
if __name__ == '__main__':
    open(f'cdna_kernels/{NAME}.s', 'w').write(build_text())
```
